```python
import torch

def _softmax(x, axis=-1):
    return torch.softmax(x, dim=axis)
def _gelu(x):
    return torch.nn.functional.gelu(x, approximate="tanh")
def _silu(x):
    return torch.nn.functional.silu(x)
def _sigmoid(x):
    return torch.sigmoid(x)
def _layernorm(x, axis=-1, eps=1e-5):
    m = x.mean(dim=axis, keepdim=True)
    v = x.var(dim=axis, keepdim=True, unbiased=False)
    return (x - m) / torch.sqrt(v + eps)
def _scatter_add(tgt, idx, src, axis=0):
    return tgt.clone().index_add_(axis, idx, src)
def _segment_sum(src, seg, n):
    out = torch.zeros((n,) + src.shape[1:], dtype=src.dtype)
    return out.index_add_(0, seg, src)
def _pad(x, pw):
    flat = tuple(v for pair in reversed(pw) for v in pair)
    return torch.nn.functional.pad(x, flat)

kernel_name = 'recurrent_scan__spectral_fnet__mixer_channel_mlp__prompt'

def setup_inputs():

    _w = (lambda a: (lambda t: t.to(torch.bfloat16) if t.is_floating_point() else t)(torch.as_tensor(a)))
    def _A_setup():
        B, S, D = 1, 2048, 576
        ns = torch.arange(S)[:, None] * torch.arange(S)[None, :]
        nd = torch.arange(D)[:, None] * torch.arange(D)[None, :]
        Ws_re = torch.cos(-2.0 * torch.pi * ns / S).to(float)
        Ws_im = torch.sin(-2.0 * torch.pi * ns / S).to(float)
        Wd_re = torch.cos(-2.0 * torch.pi * nd / D).to(float)
        Wd_im = torch.sin(-2.0 * torch.pi * nd / D).to(float)
        return {
            "x": _w((lambda *s: torch.randn(*s, dtype=torch.bfloat16) * 0.05)(B, S, D)),
            "dft_seq_re": _w(Ws_re),
            "dft_seq_im": _w(Ws_im),
            "dft_hid_re": _w(Wd_re),
            "dft_hid_im": _w(Wd_im),
        }
    _A_in = _A_setup()

    def _B_setup():
        B, S, D, F = 1, 2048, 576, 4608
        return {
            "x": _w((lambda *s: torch.randn(*s, dtype=torch.bfloat16) * 0.05)(B, S, D)),
            "w1": _w((lambda *s: torch.randn(*s, dtype=torch.bfloat16) * 0.8)(D, F) * (D ** -0.5)),
            "b1": _w((lambda *s: torch.randn(*s, dtype=torch.bfloat16) * 0.8)(F)),
            "w2": _w((lambda *s: torch.randn(*s, dtype=torch.bfloat16) * 0.05)(F, D) * (F ** -0.5)),
            "b2": _w((lambda *s: torch.randn(*s, dtype=torch.bfloat16) * 0.05)(D)),
        }
    _B_in = _B_setup()

    return {
        "A_x": _A_in["x"],
        "A_dft_seq_re": _A_in["dft_seq_re"],
        "A_dft_seq_im": _A_in["dft_seq_im"],
        "A_dft_hid_re": _A_in["dft_hid_re"],
        "A_dft_hid_im": _A_in["dft_hid_im"],
        "B_x": _B_in["x"],
        "B_w1": _B_in["w1"],
        "B_b1": _B_in["b1"],
        "B_w2": _B_in["w2"],
        "B_b2": _B_in["b2"],
    }

def reference(A_x, A_dft_seq_re, A_dft_seq_im, A_dft_hid_re, A_dft_hid_im, B_x, B_w1, B_b1, B_w2, B_b2):
    def _A_ref(x, dft_seq_re, dft_seq_im, dft_hid_re, dft_hid_im):
        a = torch.einsum("bsd,ed->bse", x, dft_hid_re)
        b = torch.einsum("bsd,ed->bse", x, dft_hid_im)
        y = torch.einsum("ts,bse->bte", dft_seq_re, a) - torch.einsum("ts,bse->bte", dft_seq_im, b)
        return y

    def _B_ref(x, w1, b1, w2, b2):
        y = _layernorm(x, axis=-1)
        h = _gelu(torch.einsum("bsd,df->bsf", y, w1) + b1)
        return torch.einsum("bsf,fd->bsd", h, w2) + b2

    x = A_x
    xn = _layernorm(x, axis=-1)
    s = _A_ref(xn, A_dft_seq_re, A_dft_seq_im, A_dft_hid_re, A_dft_hid_im)
    g = _silu(_B_ref(xn, B_w1, B_b1, B_w2, B_b2))
    return x + s * g
```

```python
import struct
import sys

NAME = "recurrent_scan__spectral_fnet__mixer_channel_mlp__prompt"

S, D, F = 2048, 576, 4608
WS_XN = 0
WS_Y = 4 << 20
WS_ABT = 8 << 20
WS_H = 16 << 20
WS_P = 48 << 20
P_BYTES = S * D * 4


def f2h(x):
    return "0x%08x" % struct.unpack("<I", struct.pack("<f", x))[0]


class Asm:
    def __init__(self):
        self.lines = []
        self.vm = []

    def e(self, s):
        self.lines.append("    " + s)

    def label(self, s):
        self.lines.append(s + ":")

    def c(self, s):
        self.lines.append("    ; " + s)

    def vmem(self, s, tag):
        self.e(s)
        self.vm.append(tag)

    def wait_vm(self, tag, extra=""):
        hits = [i for i, t in enumerate(self.vm) if t == tag]
        if not hits:
            if extra:
                self.e("s_waitcnt%s" % extra)
            return
        idx = max(hits)
        n = len(self.vm) - 1 - idx
        n = min(n, 63)
        self.e("s_waitcnt vmcnt(%d)%s" % (n, extra))
        self.vm = self.vm[idx + 1:]

    def text(self):
        return "\n".join(self.lines) + "\n"


def srd(a, d, lo, hi, nbytes, add=0):
    if add:
        a.e("s_add_u32 s%d, s%d, 0x%x" % (d, lo, add))
        a.e("s_addc_u32 s%d, s%d, 0" % (d + 1, hi))
    else:
        a.e("s_mov_b32 s%d, s%d" % (d, lo))
        a.e("s_mov_b32 s%d, s%d" % (d + 1, hi))
    a.e("s_mov_b32 s%d, 0x%x" % (d + 2, nbytes))
    a.e("s_mov_b32 s%d, 0x00020000" % (d + 3))


def kernel_head(a, name):
    a.lines.append(".globl %s" % name)
    a.lines.append(".p2align 8")
    a.lines.append(".type %s,@function" % name)
    a.label(name)


def descriptor(name, vgpr, accum, sgpr=102):
    return """.amdhsa_kernel %s
  .amdhsa_next_free_vgpr %d
  .amdhsa_next_free_sgpr %d
  .amdhsa_accum_offset %d
  .amdhsa_group_segment_fixed_size 0
  .amdhsa_kernarg_size 104
  .amdhsa_user_sgpr_count 2
  .amdhsa_user_sgpr_kernarg_segment_ptr 1
  .amdhsa_system_sgpr_workgroup_id_x 1
.end_amdhsa_kernel
""" % (name, vgpr, sgpr, accum)


def gen_ln():
    a = Asm()
    kernel_head(a, "ln_kernel")
    a.e("s_cmp_ge_u32 s2, 256")
    a.e("s_cbranch_scc1 LN_END")
    a.e("s_load_dwordx2 s[4:5], s[0:1], 0")
    a.e("s_load_dwordx2 s[6:7], s[0:1], 96")
    a.e("v_lshrrev_b32 v1, 5, v0")
    a.e("s_lshl_b32 s3, s2, 3")
    a.e("v_add_u32 v1, s3, v1")
    a.e("v_and_b32 v2, 31, v0")
    a.e("v_mul_u32_u24 v3, 1152, v1")
    a.e("v_lshl_add_u32 v3, v2, 2, v3")
    a.e("s_waitcnt lgkmcnt(0)")
    srd(a, 8, 4, 5, S * D * 2)
    srd(a, 12, 6, 7, S * D * 2, WS_XN)
    srd(a, 16, 6, 7, S * D * 2, WS_Y)
    for j in range(9):
        a.e("buffer_load_dword v%d, v3, s[8:11], 0 offen offset:%d" % (10 + j, j * 128))
    a.e("s_mov_b32 s20, 0xffff0000")
    a.e("s_waitcnt vmcnt(0)")
    E = 20
    T = 40
    P = 10

    def reduce32(v, tmp):
        for x in (1, 2, 4, 8, 16):
            a.e("ds_swizzle_b32 v%d, v%d offset:0x%x" % (tmp, v, (x << 10) | 0x1F))
            a.e("s_waitcnt lgkmcnt(0)")
            a.e("v_add_f32 v%d, v%d, v%d" % (v, v, tmp))

    def bf16r(v):
        a.e("v_cvt_pk_bf16_f32 v%d, v%d, v%d" % (v, v, v))
        a.e("v_lshlrev_b32 v%d, 16, v%d" % (v, v))

    def ln_pass(srd_out):
        for j in range(9):
            a.e("v_lshlrev_b32 v%d, 16, v%d" % (E + 2 * j, P + j))
            a.e("v_and_b32 v%d, s20, v%d" % (E + 2 * j + 1, P + j))
        a.e("v_add_f32 v4, v%d, v%d" % (E, E + 1))
        a.e("v_add_f32 v5, v%d, v%d" % (E + 2, E + 3))
        for j in range(4, 18, 2):
            a.e("v_add_f32 v4, v4, v%d" % (E + j))
            a.e("v_add_f32 v5, v5, v%d" % (E + j + 1))
        a.e("v_add_f32 v4, v4, v5")
        reduce32(4, 5)
        a.e("v_mul_f32 v4, %s, v4" % f2h(1.0 / D))
        for j in range(18):
            a.e("v_sub_f32 v%d, v%d, v4" % (T + j, E + j))
        a.e("v_mul_f32 v6, v%d, v%d" % (T, T))
        a.e("v_mul_f32 v7, v%d, v%d" % (T + 1, T + 1))
        for j in range(2, 18, 2):
            a.e("v_fmac_f32 v6, v%d, v%d" % (T + j, T + j))
            a.e("v_fmac_f32 v7, v%d, v%d" % (T + j + 1, T + j + 1))
        a.e("v_add_f32 v6, v6, v7")
        reduce32(6, 7)
        a.e("v_mul_f32 v6, %s, v6" % f2h(1.0 / D))
        bf16r(4)
        bf16r(6)
        a.e("v_add_f32 v6, %s, v6" % f2h(1e-5))
        bf16r(6)
        a.e("v_sqrt_f32 v6, v6")
        a.e("s_nop 0")
        bf16r(6)
        a.e("v_rcp_f32 v6, v6")
        for j in range(9):
            a.e("v_sub_f32 v%d, v%d, v4" % (T + 2 * j, E + 2 * j))
            a.e("v_sub_f32 v%d, v%d, v4" % (T + 2 * j + 1, E + 2 * j + 1))
            a.e("v_cvt_pk_bf16_f32 v8, v%d, v%d" % (T + 2 * j, T + 2 * j + 1))
            a.e("v_lshlrev_b32 v%d, 16, v8" % (T + 2 * j))
            a.e("v_and_b32 v%d, s20, v8" % (T + 2 * j + 1))
            a.e("v_mul_f32 v%d, v%d, v6" % (T + 2 * j, T + 2 * j))
            a.e("v_mul_f32 v%d, v%d, v6" % (T + 2 * j + 1, T + 2 * j + 1))
            a.e("v_cvt_pk_bf16_f32 v%d, v%d, v%d" % (P + j, T + 2 * j, T + 2 * j + 1))
            a.e("buffer_store_dword v%d, v3, s[%d:%d], 0 offen offset:%d" % (P + j, srd_out, srd_out + 3, j * 128))

    ln_pass(12)
    ln_pass(16)
    a.label("LN_END")
    a.e("s_endpgm")
    return a.text(), descriptor("ln_kernel", 64, 64, 32)


KA_STAGE = 24576
KA_NBUF = 6


def afrag(rt, j):
    i = rt * 36 + j
    if i < 64:
        return "a[%d:%d]" % (4 * i, 4 * i + 3)
    i -= 64
    return "v[%d:%d]" % (224 + 4 * i, 224 + 4 * i + 3)


def gen_ka():
    a = Asm()
    kernel_head(a, "ka_kernel")
    a.e("s_cmp_ge_u32 s2, 256")
    a.e("s_cbranch_scc1 KA_END")
    a.e("s_and_b32 s24, s2, 7")
    a.e("s_lshr_b32 s25, s2, 6")
    a.e("s_lshl_b32 s25, s25, 3")
    a.e("s_add_u32 s24, s24, s25")
    a.e("s_cmp_ge_u32 s24, 30")
    a.e("s_cbranch_scc1 KA_END")
    a.e("s_lshr_b32 s25, s2, 3")
    a.e("s_and_b32 s25, s25, 7")
    a.e("s_load_dwordx4 s[28:31], s[0:1], 24")
    a.e("s_load_dwordx4 s[32:35], s[0:1], 48")
    a.e("s_load_dwordx2 s[6:7], s[0:1], 96")
    a.e("v_lshrrev_b32 v1, 6, v0")
    a.e("v_and_b32 v2, 63, v0")
    a.e("s_nop 0")
    a.e("v_readfirstlane_b32 s26, v1")
    a.e("v_and_b32 v3, 31, v2")
    a.e("v_lshrrev_b32 v4, 5, v2")
    a.e("s_lshl_b32 s27, s25, 8")
    a.e("s_lshl_b32 s36, s26, 6")
    a.e("s_add_u32 s27, s27, s36")
    a.e("v_add_u32 v5, s27, v3")
    a.e("v_mul_u32_u24 v5, 1152, v5")
    a.e("v_lshl_add_u32 v5, v4, 4, v5")
    a.e("v_add_u32 v6, 36864, v5")
    a.e("s_mul_i32 s37, s26, 6144")
    a.e("s_waitcnt lgkmcnt(0)")
    a.e("s_cmp_ge_u32 s24, 6")
    a.e("s_cbranch_scc1 KA_G3")

    for path in (1, 3):
        a.vm = []
        if path == 3:
            a.label("KA_G3")
        if path == 1:
            srd(a, 8, 6, 7, S * D * 2, WS_XN)
            a.e("s_cmp_ge_u32 s24, 3")
            a.e("s_cselect_b32 s38, s30, s28")
            a.e("s_cselect_b32 s39, s31, s29")
            srd(a, 12, 38, 39, D * D * 2)
            srd(a, 16, 6, 7, 1152 * S * 2, WS_ABT)
            a.e("s_sub_u32 s40, s24, 3")
            a.e("s_cselect_b32 s40, s24, s40")
            a.e("s_mul_i32 s40, s40, %d" % (192 * 1152))
        else:
            srd(a, 8, 6, 7, S * D * 2, WS_Y)
            srd(a, 12, 32, 33, D * F * 2)
            srd(a, 16, 6, 7, S * F * 2, WS_H)
            srd(a, 20, 34, 35, F * 2)
            a.e("s_sub_u32 s41, s24, 6")
            a.e("s_mul_i32 s40, s41, 384")
        a.e("v_lshrrev_b32 v7, 3, v2")
        a.e("v_and_b32 v8, 7, v2")
        for i in range(6):
            a.e("s_mul_i32 s42, s26, 6")
            a.e("s_add_u32 s42, s42, %d" % i)
            if path == 1:
                a.e("s_lshr_b32 s43, s42, 3")
                a.e("s_and_b32 s42, s42, 7")
                a.e("s_lshl_b32 s42, s42, 3")
                a.e("v_add_u32 v9, s42, v7")
                a.e("v_lshrrev_b32 v16, 1, v9")
                a.e("v_and_b32 v16, 7, v16")
                a.e("v_xor_b32 v16, v16, v8")
                a.e("v_mul_u32_u24 v9, 1152, v9")
                a.e("v_lshl_add_u32 v9, v16, 4, v9")
                a.e("s_lshl_b32 s43, s43, 7")
                a.e("v_add_u32 v%d, s43, v9" % (10 + i))
            else:
                a.e("s_lshl_b32 s42, s42, 3")
                a.e("v_add_u32 v9, s42, v7")
                a.e("v_lshrrev_b32 v16, 1, v9")
                a.e("v_and_b32 v16, 1, v16")
                a.e("v_lshlrev_b32 v16, 2, v16")
                a.e("v_xor_b32 v16, v16, v8")
                a.e("v_mul_u32_u24 v9, 9216, v9")
                a.e("v_lshl_add_u32 v%d, v16, 4, v9" % (10 + i))
        if path == 1:
            a.e("v_lshrrev_b32 v9, 1, v3")
            a.e("v_and_b32 v9, 7, v9")
            a.e("v_xor_b32 v9, v9, v4")
            a.e("v_lshlrev_b32 v9, 4, v9")
            a.e("v_lshl_add_u32 v20, v3, 7, v9")
            for p in range(1, 4):
                a.e("v_xor_b32 v%d, %d, v20" % (20 + p, p << 5))
            rd_regs = [20, 21, 22, 23]
        else:
            a.e("v_lshrrev_b32 v9, 5, v2")
            a.e("v_lshlrev_b32 v9, 3, v9")
            a.e("v_bfe_u32 v16, v2, 2, 2")
            a.e("v_add_u32 v9, v9, v16")
            a.e("v_lshlrev_b32 v9, 7, v9")
            a.e("v_bfe_u32 v17, v2, 4, 1")
            a.e("v_lshlrev_b32 v17, 5, v17")
            a.e("v_and_b32 v18, 3, v2")
            a.e("v_lshl_add_u32 v17, v18, 3, v17")
            a.e("v_lshrrev_b32 v16, 1, v16")
            a.e("v_lshlrev_b32 v16, 6, v16")
            a.e("v_xor_b32 v17, v17, v16")
            a.e("v_add_u32 v20, v9, v17")
            a.e("v_xor_b32 v21, 64, v20")
            rd_regs = [20, 21]
        if path == 1:
            a.e("s_mul_i32 s42, s24, 192")
            a.e("v_add_u32 v24, s42, v3")
            a.e("v_lshlrev_b32 v24, 12, v24")
            a.e("v_lshl_add_u32 v24, v4, 4, v24")
            a.e("s_lshl_b32 s42, s27, 1")
            a.e("v_add_u32 v24, s42, v24")
        else:
            a.e("v_add_u32 v24, s27, v3")
            a.e("v_mul_u32_u24 v24, 9216, v24")
            a.e("v_lshl_add_u32 v24, v4, 4, v24")
            a.e("v_add_u32 v24, s40, v24")
            a.e("v_add_u32 v25, 294912, v24")
            a.e("v_lshlrev_b32 v26, 3, v4")
            a.e("v_add_u32 v26, s40, v26")
            a.e("s_mov_b32 s44, %s" % f2h(-2.0 * 1.4426950408889634 * 0.7978845608028654 * 0.044715))
            a.e("v_mov_b32 v27, %s" % f2h(-2.0 * 1.4426950408889634 * 0.7978845608028654))
            a.e("s_mov_b32 s45, 0xffff0000")

        def dma_stage(st):
            c, kb = st // 3, st % 3
            buf = st % KA_NBUF
            if path == 1:
                so = c * 64 * 1152 + kb * 384
            else:
                so = kb * 192 * 9216 + c * 128
            a.e("s_add_u32 s46, s40, 0x%x" % so)
            for i in range(6):
                a.e("s_add_u32 m0, s37, 0x%x" % (buf * KA_STAGE + i * 1024))
                a.e("s_nop 0")
                a.vmem("buffer_load_dwordx4 v%d, s[12:15], s46 offen lds" % (10 + i), "B%d" % st)

        def a_loads(kb):
            for j in range(kb * 12, kb * 12 + 12):
                for rt in range(2):
                    a.vmem("buffer_load_dwordx4 %s, v%d, s[8:11], 0 offen offset:%d"
                           % (afrag(rt, j), 5 + rt, j * 32), "A%d" % kb)

        dma_stage(0)
        a_loads(0)
        dma_stage(1)
        a_loads(1)
        dma_stage(2)
        a_loads(2)
        dma_stage(3)
        dma_stage(4)
        dma_stage(5)

        state = {"base": 0}

        def set_base(buf):
            nb = (buf // 2) * 2 * KA_STAGE
            if nb != state["base"]:
                d = nb - state["base"]
                for r in rd_regs:
                    if d > 0:
                        a.e("v_add_u32 v%d, 0x%x, v%d" % (r, d, r))
                    else:
                        a.e("v_subrev_u32 v%d, 0x%x, v%d" % (r, -d, r))
                state["base"] = nb

        def bfrag(sel, ct):
            return 64 + sel * 8 + ct * 4

        def reads(st, step, sel):
            buf = st % KA_NBUF
            set_base(buf)
            off = buf * KA_STAGE - state["base"]
            n = 0
            if path == 1:
                sub, p = step // 4, step % 4
                for ct in range(2):
                    r = bfrag(sel, ct)
                    a.e("ds_read_b128 v[%d:%d], v%d offset:%d"
                        % (r, r + 3, 20 + p, off + sub * 8192 + ct * 4096))
                    n += 1
            else:
                for ct in range(2):
                    r = bfrag(sel, ct)
                    for sec in range(2):
                        a.e("ds_read_b64_tr_b16 v[%d:%d], v%d offset:%d"
                            % (r + 2 * sec, r + 2 * sec + 1, 20 + ct, off + step * 2048 + sec * 512))
                        n += 1
            return n

        def acc(c, rt, ct):
            return 96 + (c % 2) * 64 + (rt * 2 + ct) * 16

        def epilogue(c):
            out = []
            if path == 3:
                for ct in range(2):
                    for g in range(4):
                        r = 28 + (ct * 4 + g) * 2
                        out.append(("vm", "buffer_load_dwordx2 v[%d:%d], v26, s[20:23], 0 offen offset:%d"
                                    % (r, r + 1, c * 128 + ct * 64 + g * 16), "bias%d" % c))
                out.append(("waitvm", "bias%d" % c))
            for ct in range(2):
                if path == 3:
                    for g in range(4):
                        r = 28 + (ct * 4 + g) * 2
                        for d in range(2):
                            out.append(("v", "v_lshlrev_b32 v%d, 16, v%d" % (44 + g * 4 + d * 2, r + d)))
                            out.append(("v", "v_and_b32 v%d, s45, v%d" % (44 + g * 4 + d * 2 + 1, r + d)))
                for rt in range(2):
                    A = acc(c, rt, ct)
                    for kp in range(2):
                        if path == 3:
                            for q in range(8):
                                x = A + kp * 8 + q
                                t = 80 + q
                                out.append(("v", "v_add_f32 v%d, v%d, v%d" % (x, x, 44 + kp * 8 + q)))
                            for q in range(8):
                                x = A + kp * 8 + q
                                t = 80 + q
                                out.append(("v", "v_mul_f32 v%d, v%d, v%d" % (t, x, x)))
                            for q in range(8):
                                t = 80 + q
                                out.append(("v", "v_fma_f32 v%d, v%d, s44, v27" % (t, t)))
                            for q in range(8):
                                x = A + kp * 8 + q
                                t = 80 + q
                                out.append(("v", "v_mul_f32 v%d, v%d, v%d" % (t, t, x)))
                            for q in range(8):
                                t = 80 + q
                                out.append(("t", "v_exp_f32 v%d, v%d" % (t, t)))
                            for q in range(8):
                                t = 80 + q
                                out.append(("v", "v_add_f32 v%d, 1.0, v%d" % (t, t)))
                            for q in range(8):
                                t = 80 + q
                                out.append(("t", "v_rcp_f32 v%d, v%d" % (t, t)))
                            for q in range(8):
                                x = A + kp * 8 + q
                                t = 80 + q
                                out.append(("v", "v_mul_f32 v%d, v%d, v%d" % (t, t, x)))
                            src = 80
                        else:
                            src = A + kp * 8
                        P = 88 + ((rt * 2 + kp) % 2) * 4
                        for q in range(4):
                            out.append(("v", "v_cvt_pk_bf16_f32 v%d, v%d, v%d" % (P + q, src + 2 * q, src + 2 * q + 1)))
                        out.append(("v", "s_nop 1"))
                        out.append(("v", "v_permlane32_swap_b32 v%d, v%d" % (P, P + 2)))
                        out.append(("v", "v_permlane32_swap_b32 v%d, v%d" % (P + 1, P + 3)))
                        if path == 1:
                            out.append(("v", "s_mov_b32 s47, 0x%x" % ((c * 64 + ct * 32) * 4096)))
                            out.append(("vm", "buffer_store_dwordx4 v[%d:%d], v24, s[16:19], s47 offen offset:%d"
                                        % (P, P + 3, rt * 64 + kp * 32), "st%d" % c))
                        else:
                            out.append(("vm", "buffer_store_dwordx4 v[%d:%d], v%d, s[16:19], 0 offen offset:%d"
                                        % (P, P + 3, 24 + rt, c * 128 + ct * 64 + kp * 32), "st%d" % c))
            return out

        fill = []

        def emit_fill(budget):
            while fill and budget > 0:
                f = fill.pop(0)
                if f[0] == "vm":
                    a.vmem(f[1], f[2])
                    budget -= 1
                elif f[0] == "waitvm":
                    a.wait_vm(f[1])
                    budget -= 1
                elif f[0] == "t":
                    a.e(f[1])
                    budget -= 2
                else:
                    a.e(f[1])
                    budget -= 1

        a.wait_vm("B0")
        a.e("s_barrier")
        nrd = reads(0, 0, 0)
        sel = 0
        NST = 9
        for st in range(NST):
            c, kb = st // 3, st % 3
            for step in range(12):
                last = step == 11
                if not last:
                    n2 = reads(st, step + 1, sel ^ 1)
                    a.e("s_waitcnt lgkmcnt(%d)" % n2)
                else:
                    if st + 1 < NST:
                        a.wait_vm("B%d" % (st + 1), " lgkmcnt(0)")
                        a.e("s_barrier")
                        if st + KA_NBUF < NST:
                            dma_stage(st + KA_NBUF)
                        reads(st + 1, 0, sel ^ 1)
                    else:
                        a.e("s_waitcnt lgkmcnt(0)")
                if c == 0 and step == 0:
                    a.wait_vm("A%d" % kb)
                j = kb * 12 + step
                first = (kb == 0 and step == 0)
                if first:
                    emit_fill(10 ** 9)
                for rt in range(2):
                    for ct in range(2):
                        A = acc(c, rt, ct)
                        bf = "v[%d:%d]" % (bfrag(sel, ct), bfrag(sel, ct) + 3)
                        cin = "0" if first else "v[%d:%d]" % (A, A + 15)
                        if path == 1:
                            a.e("v_mfma_f32_32x32x16_bf16 v[%d:%d], %s, %s, %s" % (A, A + 15, afrag(rt, j), bf, cin))
                        else:
                            a.e("v_mfma_f32_32x32x16_bf16 v[%d:%d], %s, %s, %s" % (A, A + 15, bf, afrag(rt, j), cin))
                        emit_fill(6 if path == 3 else 3)
                sel ^= 1
                if kb == 0 and step == 3 and c > 0:
                    fill.extend(epilogue(c - 1))
        emit_fill(10 ** 9)
        a.e("s_nop 7")
        a.e("s_nop 7")
        fill.extend(epilogue(2))
        emit_fill(10 ** 9)
        a.e("s_endpgm")
    a.label("KA_END")
    a.e("s_endpgm")
    return a.text(), descriptor("ka_kernel", 512, 256, 64)


KB_STAGE = 34816
KB_BOFF = 16384


def gen_kb():
    a = Asm()
    kernel_head(a, "kb_kernel")
    a.e("s_cmp_ge_u32 s2, 256")
    a.e("s_cbranch_scc1 KB_END")
    a.e("s_and_b32 s24, s2, 7")
    a.e("s_lshr_b32 s25, s24, 1")
    a.e("s_and_b32 s24, s24, 1")
    a.e("s_lshr_b32 s26, s2, 3")
    a.e("s_and_b32 s27, s26, 3")
    a.e("s_lshr_b32 s26, s26, 2")
    a.e("s_lshl_b32 s24, s24, 3")
    a.e("s_add_u32 s26, s26, s24")
    a.e("s_load_dwordx4 s[28:31], s[0:1], 8")
    a.e("s_load_dwordx2 s[32:33], s[0:1], 64")
    a.e("s_load_dwordx2 s[6:7], s[0:1], 96")
    a.e("v_lshrrev_b32 v1, 6, v0")
    a.e("v_and_b32 v2, 63, v0")
    a.e("s_nop 0")
    a.e("v_readfirstlane_b32 s34, v1")
    a.e("v_and_b32 v3, 15, v2")
    a.e("v_lshrrev_b32 v4, 4, v2")
    a.e("v_lshrrev_b32 v7, 3, v2")
    a.e("v_and_b32 v8, 7, v2")
    a.e("s_lshl_b32 s35, s26, 7")
    a.e("s_lshl_b32 s36, s34, 5")
    a.e("s_add_u32 s36, s36, s35")
    a.e("v_add_u32 v5, s36, v3")
    a.e("v_mul_u32_u24 v5, 2304, v5")
    a.e("v_lshl_add_u32 v5, v4, 4, v5")
    a.e("s_mul_i32 s37, s27, 576")
    a.e("s_mul_i32 s38, s25, 0x%x" % P_BYTES)
    a.e("s_add_u32 s37, s37, s38")
    a.e("v_add_u32 v5, s37, v5")
    a.e("v_add_u32 v6, 36864, v5")
    a.e("v_lshrrev_b32 v9, 1, v3")
    a.e("v_xor_b32 v9, v9, v4")
    a.e("v_lshlrev_b32 v9, 4, v9")
    a.e("v_lshl_add_u32 v9, v3, 7, v9")
    a.e("s_lshl_b32 s38, s34, 12")
    for buf in range(4):
        a.e("s_add_u32 s39, s38, 0x%x" % (buf * KB_STAGE))
        a.e("v_add_u32 v%d, s39, v9" % (40 + buf * 2))
        a.e("v_xor_b32 v%d, 64, v%d" % (40 + buf * 2 + 1, 40 + buf * 2))
    a.e("s_waitcnt lgkmcnt(0)")
    srd(a, 16, 6, 7, 4 * P_BYTES, WS_P)
    a.e("s_cmp_ge_u32 s25, 2")
    a.e("s_cbranch_scc1 KB_G4")

    for path in (2, 4):
        a.vm = []
        if path == 4:
            a.label("KB_G4")
        nst = 32 if path == 2 else 36
        lda = 4096 if path == 2 else 9216
        if path == 2:
            a.e("s_cmp_eq_u32 s25, 1")
            a.e("s_cselect_b32 s38, s30, s28")
            a.e("s_cselect_b32 s39, s31, s29")
            srd(a, 8, 38, 39, S * S * 2)
            srd(a, 12, 6, 7, 1152 * S * 2, WS_ABT)
            a.e("s_mov_b32 s40, 0")
            a.e("s_mov_b32 s41, 0")
            kb_step = 128
        else:
            srd(a, 8, 6, 7, S * F * 2, WS_H)
            srd(a, 12, 32, 33, F * D * 2)
            a.e("s_sub_u32 s38, s25, 2")
            a.e("s_mul_i32 s40, s38, 4608")
            a.e("s_mul_i32 s41, s38, %d" % (2304 * 1152))
            kb_step = 64 * 1152
        for i in range(4):
            a.e("s_lshl_b32 s42, s34, 5")
            a.e("s_add_u32 s42, s42, %d" % (8 * i))
            a.e("v_add_u32 v10, s42, v7")
            a.e("v_lshrrev_b32 v11, 1, v10")
            a.e("v_and_b32 v11, 7, v11")
            a.e("v_xor_b32 v11, v11, v8")
            a.e("v_add_u32 v10, s35, v10")
            a.e("v_mul_u32_u24 v10, %d, v10" % lda)
            a.e("v_lshl_add_u32 v%d, v11, 4, v10" % (20 + i))
        a.e("s_mul_i32 s42, s34, 18")
        a.e("s_lshr_b32 s42, s42, 2")
        a.e("s_lshl_b32 s43, s42, 10")
        a.e("s_add_u32 s43, s43, %d" % KB_BOFF)
        a.e("s_lshl_b32 s44, s34, 12")
        a.e("s_lshl_b32 s42, s42, 6")
        for i in range(5):
            a.e("v_add_u32 v10, s42, v2")
            if i:
                a.e("v_add_u32 v10, %d, v10" % (64 * i))
            if path == 2:
                a.e("v_lshrrev_b32 v11, 3, v10")
                a.e("v_lshrrev_b32 v12, 1, v11")
                a.e("v_and_b32 v12, 7, v12")
                a.e("v_xor_b32 v12, v12, v8")
                a.e("s_mul_i32 s45, s27, 144")
                a.e("s_mul_i32 s46, s25, 576")
                a.e("s_add_u32 s45, s45, s46")
                a.e("v_add_u32 v11, s45, v11")
                a.e("v_lshlrev_b32 v11, 12, v11")
                a.e("v_lshl_add_u32 v%d, v12, 4, v11" % (24 + i))
            else:
                a.e("v_mul_u32_u24 v11, 3641, v10")
                a.e("v_lshrrev_b32 v11, 16, v11")
                a.e("v_mul_u32_u24 v12, 18, v11")
                a.e("v_sub_u32 v12, v10, v12")
                a.e("v_and_b32 v13, 0x33, v11")
                a.e("v_bfe_u32 v14, v11, 2, 1")
                a.e("v_lshl_add_u32 v13, v14, 3, v13")
                a.e("v_bfe_u32 v14, v11, 3, 1")
                a.e("v_lshl_add_u32 v13, v14, 2, v13")
                a.e("v_mul_u32_u24 v13, 1152, v13")
                a.e("v_lshl_add_u32 v13, v12, 4, v13")
                a.e("s_mul_i32 s45, s27, 288")
                a.e("v_add_u32 v%d, s45, v13" % (24 + i))
        if path == 2:
            for buf in range(4):
                a.e("v_add_u32 v%d, 0x%x, v9" % (48 + buf * 2, buf * KB_STAGE + KB_BOFF))
                a.e("v_xor_b32 v%d, 64, v%d" % (48 + buf * 2 + 1, 48 + buf * 2))
        else:
            a.e("v_bfe_u32 v10, v2, 2, 2")
            a.e("v_bfe_u32 v11, v2, 4, 1")
            a.e("v_lshl_add_u32 v10, v11, 2, v10")
            a.e("v_bfe_u32 v11, v2, 5, 1")
            a.e("v_lshl_add_u32 v10, v11, 4, v10")
            a.e("v_mul_u32_u24 v10, 288, v10")
            a.e("v_and_b32 v11, 3, v2")
            a.e("v_lshl_add_u32 v10, v11, 3, v10")
            for buf in range(4):
                a.e("v_add_u32 v%d, 0x%x, v10" % (48 + buf * 2, buf * KB_STAGE + KB_BOFF))

        def dma(buf, tag):
            for i in range(4):
                a.e("s_add_u32 m0, s44, 0x%x" % (buf * KB_STAGE + i * 1024))
                a.e("s_nop 0")
                a.vmem("buffer_load_dwordx4 v%d, s[8:11], s40 offen lds" % (20 + i), tag)
            for i in range(5):
                a.e("s_add_u32 m0, s43, 0x%x" % (buf * KB_STAGE + i * 1024))
                a.e("s_nop 0")
                a.vmem("buffer_load_dwordx4 v%d, s[12:15], s41 offen lds" % (24 + i), tag)
            a.e("s_add_u32 s40, s40, 128")
            a.e("s_add_u32 s41, s41, 0x%x" % kb_step)

        def fa(s, rt):
            return 64 + s * 48 + rt * 4

        def fb(s, ct):
            return 64 + s * 48 + 8 + ct * 4

        ACC = 160

        def read_list(buf, ks, s):
            L = []
            for rt in range(2):
                L.append("ds_read_b128 v[%d:%d], v%d offset:%d" % (fa(s, rt), fa(s, rt) + 3, 40 + buf * 2 + ks, rt * 2048))
            for ct in range(9):
                if path == 2:
                    L.append("ds_read_b128 v[%d:%d], v%d offset:%d" % (fb(s, ct), fb(s, ct) + 3, 48 + buf * 2 + ks, ct * 2048))
                else:
                    for sec in range(2):
                        L.append("ds_read_b64_tr_b16 v[%d:%d], v%d offset:%d"
                                 % (fb(s, ct) + 2 * sec, fb(s, ct) + 2 * sec + 1, 48 + buf * 2,
                                    ks * 9216 + sec * 2304 + ct * 32))
            return L

        def mfmas(s, rds, first=False):
            rds = list(rds)
            per = (len(rds) + 17) // 18
            for ct in range(9):
                for rt in range(2):
                    A = ACC + (ct * 2 + rt) * 4
                    cin = "0" if first else "v[%d:%d]" % (A, A + 3)
                    a.e("v_mfma_f32_16x16x32_bf16 v[%d:%d], v[%d:%d], v[%d:%d], %s"
                        % (A, A + 3, fb(s, ct), fb(s, ct) + 3, fa(s, rt), fa(s, rt) + 3, cin))
                    for _ in range(per):
                        if rds:
                            a.e(rds.pop(0))
            assert not rds

        for st in range(4):
            dma(st, "S%d" % st)
        a.wait_vm("S0")
        a.e("s_barrier")
        for r in read_list(0, 0, 0):
            a.e(r)
        for i in range(72):
            a.e("v_mov_b32 v%d, 0" % (ACC + i))

        def stage_body(buf, do_dma, vmw, last):
            a.e("s_waitcnt lgkmcnt(0)")
            mfmas(0, read_list(buf, 1, 1))
            if not last:
                a.e("s_waitcnt vmcnt(%d) lgkmcnt(0)" % vmw)
                a.e("s_barrier")
                if do_dma:
                    dma(buf, "x")
                mfmas(1, read_list((buf + 1) % 4, 0, 0))
            else:
                a.e("s_waitcnt lgkmcnt(0)")
                mfmas(1, [])

        niter = nst // 4 - 1
        a.e("s_mov_b32 s47, %d" % niter)
        lab = "KB_LOOP%d" % path
        a.label(lab)
        for buf in range(4):
            stage_body(buf, True, 18, False)
        a.e("s_sub_u32 s47, s47, 1")
        a.e("s_cmp_lg_u32 s47, 0")
        a.e("s_cbranch_scc1 %s" % lab)
        stage_body(0, False, 18, False)
        stage_body(1, False, 9, False)
        stage_body(2, False, 0, False)
        stage_body(3, False, 0, True)
        a.e("s_nop 7")
        a.e("s_nop 7")
        for ct in range(9):
            for rt in range(2):
                A = ACC + (ct * 2 + rt) * 4
                a.e("buffer_store_dwordx4 v[%d:%d], v%d, s[16:19], 0 offen offset:%d" % (A, A + 3, 5 + rt, ct * 64))
        a.e("s_endpgm")
    a.label("KB_END")
    a.e("s_endpgm")
    return a.text(), descriptor("kb_kernel", 256, 256, 64)


def gen_kc():
    a = Asm()
    kernel_head(a, "kc_kernel")
    a.e("s_cmp_ge_u32 s2, 576")
    a.e("s_cbranch_scc1 KC_END")
    a.e("s_load_dwordx2 s[4:5], s[0:1], 0")
    a.e("s_load_dwordx4 s[24:27], s[0:1], 72")
    a.e("s_load_dwordx2 s[6:7], s[0:1], 96")
    a.e("s_lshl_b32 s3, s2, 8")
    a.e("v_add_u32 v1, s3, v0")
    a.e("v_lshlrev_b32 v2, 5, v1")
    a.e("v_lshlrev_b32 v3, 4, v1")
    a.e("s_mov_b32 s28, 0x%x" % ((1 << 32) // 72 + 1))
    a.e("v_mul_hi_u32 v4, v1, s28")
    a.e("v_mul_u32_u24 v4, 72, v4")
    a.e("v_sub_u32 v4, v1, v4")
    a.e("v_lshlrev_b32 v4, 4, v4")
    a.e("s_waitcnt lgkmcnt(0)")
    srd(a, 8, 4, 5, S * D * 2)
    srd(a, 12, 6, 7, 4 * P_BYTES, WS_P)
    srd(a, 16, 26, 27, S * D * 2)
    srd(a, 20, 24, 25, D * 2)
    for p in range(4):
        a.e("s_mov_b32 s29, 0x%x" % (p * P_BYTES))
        a.e("buffer_load_dwordx4 v[%d:%d], v2, s[12:15], s29 offen" % (16 + p * 8, 19 + p * 8))
        a.e("buffer_load_dwordx4 v[%d:%d], v2, s[12:15], s29 offen offset:16" % (20 + p * 8, 23 + p * 8))
    a.e("buffer_load_dwordx4 v[8:11], v3, s[8:11], 0 offen")
    a.e("buffer_load_dwordx4 v[12:15], v4, s[20:23], 0 offen")
    a.e("s_mov_b32 s30, 0xffff0000")
    a.e("s_mov_b32 s31, 0xbfb8aa3b")
    a.e("s_waitcnt vmcnt(0)")

    def rnd2(x, y, t):
        a.e("v_cvt_pk_bf16_f32 v%d, v%d, v%d" % (t, x, y))
        a.e("v_lshlrev_b32 v%d, 16, v%d" % (x, t))
        a.e("v_and_b32 v%d, s30, v%d" % (y, t))

    for j in range(4):
        e0, e1 = 2 * j, 2 * j + 1
        p0, p1, p2, p3 = 16, 24, 32, 40
        rnd2(p0 + e0, p0 + e1, 48)
        rnd2(p1 + e0, p1 + e1, 48)
        a.e("v_sub_f32 v%d, v%d, v%d" % (p0 + e0, p0 + e0, p1 + e0))
        a.e("v_sub_f32 v%d, v%d, v%d" % (p0 + e1, p0 + e1, p1 + e1))
        rnd2(p0 + e0, p0 + e1, 48)
        a.e("v_add_f32 v%d, v%d, v%d" % (p2 + e0, p2 + e0, p3 + e0))
        a.e("v_add_f32 v%d, v%d, v%d" % (p2 + e1, p2 + e1, p3 + e1))
        rnd2(p2 + e0, p2 + e1, 48)
        a.e("v_lshlrev_b32 v50, 16, v%d" % (12 + j))
        a.e("v_and_b32 v51, s30, v%d" % (12 + j))
        a.e("v_add_f32 v%d, v%d, v50" % (p2 + e0, p2 + e0))
        a.e("v_add_f32 v%d, v%d, v51" % (p2 + e1, p2 + e1))
        rnd2(p2 + e0, p2 + e1, 48)
        a.e("v_mul_f32 v50, s31, v%d" % (p2 + e0))
        a.e("v_mul_f32 v51, s31, v%d" % (p2 + e1))
        a.e("v_exp_f32 v50, v50")
        a.e("v_exp_f32 v51, v51")
        a.e("s_nop 0")
        a.e("v_add_f32 v50, 1.0, v50")
        a.e("v_add_f32 v51, 1.0, v51")
        a.e("v_rcp_f32 v50, v50")
        a.e("v_rcp_f32 v51, v51")
        a.e("s_nop 0")
        a.e("v_mul_f32 v%d, v%d, v50" % (p2 + e0, p2 + e0))
        a.e("v_mul_f32 v%d, v%d, v51" % (p2 + e1, p2 + e1))
        rnd2(p2 + e0, p2 + e1, 48)
        a.e("v_mul_f32 v%d, v%d, v%d" % (p0 + e0, p0 + e0, p2 + e0))
        a.e("v_mul_f32 v%d, v%d, v%d" % (p0 + e1, p0 + e1, p2 + e1))
        rnd2(p0 + e0, p0 + e1, 48)
        a.e("v_lshlrev_b32 v50, 16, v%d" % (8 + j))
        a.e("v_and_b32 v51, s30, v%d" % (8 + j))
        a.e("v_add_f32 v50, v50, v%d" % (p0 + e0))
        a.e("v_add_f32 v51, v51, v%d" % (p0 + e1))
        a.e("v_cvt_pk_bf16_f32 v%d, v50, v51" % (52 + j))
    a.e("buffer_store_dwordx4 v[52:55], v3, s[16:19], 0 offen")
    a.label("KC_END")
    a.e("s_endpgm")
    return a.text(), descriptor("kc_kernel", 64, 64, 40)


HEADER = """; Kernarg layout for this problem (104 bytes, ptrs only, base s[0:1]):
"""


def main():
    parts = [gen_ln(), gen_ka(), gen_kb(), gen_kc()]
    out = HEADER
    out += "; @launch kernel=ln_kernel grid=(256,1,1) block=(256,1,1) lds=0\n"
    out += "; @launch kernel=ka_kernel grid=(256,1,1) block=(256,1,1) lds=%d\n" % (KA_STAGE * KA_NBUF)
    out += "; @launch kernel=kb_kernel grid=(256,1,1) block=(256,1,1) lds=%d\n" % (KB_STAGE * 4)
    out += "; @launch kernel=kc_kernel grid=(576,1,1) block=(256,1,1) lds=0\n"
    out += '.amdgcn_target "amdgcn-amd-amdhsa--gfx950"\n.text\n'
    for t, _ in parts:
        out += t
    out += '.section .rodata,"a"\n'
    for _, d in parts:
        out += ".p2align 6\n" + d
    path = sys.argv[1] if len(sys.argv) > 1 else "cdna_kernels/%s.s" % NAME
    open(path, "w").write(out)
    print("wrote", path, len(out), "bytes")


if __name__ == "__main__":
    for u in range(1152 + 64):
        assert (u * 3641) >> 16 == u // 18
    main()
```

```python
import struct
import sys

NAME = "recurrent_scan__spectral_fnet__mixer_channel_mlp__prompt"

S, D, F = 2048, 576, 4608
WS_XN = 0
WS_Y = 4 << 20
WS_ABT = 8 << 20
WS_H = 16 << 20
WS_P = 48 << 20
P_BYTES = S * D * 4
WS_DBG = 200 << 20
import os
STAMPS = bool(int(os.environ.get("STAMPS", "0")))
EXP = os.environ.get("EXP", "")


def f2h(x):
    return "0x%08x" % struct.unpack("<I", struct.pack("<f", x))[0]


class Asm:
    def __init__(self):
        self.lines = []
        self.vm = []

    def e(self, s):
        self.lines.append("    " + s)

    def label(self, s):
        self.lines.append(s + ":")

    def c(self, s):
        self.lines.append("    ; " + s)

    def vmem(self, s, tag):
        self.e(s)
        self.vm.append(tag)

    def wait_vm(self, tag, extra=""):
        hits = [i for i, t in enumerate(self.vm) if t == tag]
        if not hits:
            if extra:
                self.e("s_waitcnt%s" % extra)
            return
        idx = max(hits)
        n = len(self.vm) - 1 - idx
        n = min(n, 63)
        self.e("s_waitcnt vmcnt(%d)%s" % (n, extra))
        self.vm = self.vm[idx + 1:]

    def stamp(self, i):
        if not STAMPS:
            return
        self.e("s_memtime s[%d:%d]" % (64 + 2 * i, 65 + 2 * i))
        if i == 0:
            self.e("s_memrealtime s[94:95]")
        self.e("s_waitcnt lgkmcnt(0)")

    def stamp_flush(self, n, ws_lo, ws_hi, slot):
        if not STAMPS:
            return
        self.e("s_waitcnt vmcnt(0)")
        self.stamp(n)
        self.e("s_memrealtime s[%d:%d]" % (64 + 2 * (n + 1), 65 + 2 * (n + 1)))
        self.e("s_waitcnt lgkmcnt(0)")
        srd(self, 96, ws_lo, ws_hi, 1 << 20, WS_DBG + slot * 65536)
        self.e("s_lshl_b32 s100, s2, 7")
        self.e("v_mov_b32 v1, s100")
        self.e("v_cmp_eq_u32 vcc, 0, v0")
        self.e("s_and_saveexec_b64 s[90:91], vcc")
        self.e("s_cbranch_execz STAMP_SKIP%d" % len(self.lines))
        lab = len(self.lines) - 1
        for i in range(n + 2):
            self.e("v_mov_b32 v2, s%d" % (64 + 2 * i))
            self.e("v_mov_b32 v3, s%d" % (65 + 2 * i))
            self.e("buffer_store_dwordx2 v[2:3], v1, s[96:99], 0 offen offset:%d" % (8 * i))
        self.e("v_mov_b32 v2, s94")
        self.e("v_mov_b32 v3, s95")
        self.e("buffer_store_dwordx2 v[2:3], v1, s[96:99], 0 offen offset:120")
        self.label("STAMP_SKIP%d" % lab)

    def text(self):
        return "\n".join(self.lines) + "\n"


def srd(a, d, lo, hi, nbytes, add=0):
    if add:
        a.e("s_add_u32 s%d, s%d, 0x%x" % (d, lo, add))
        a.e("s_addc_u32 s%d, s%d, 0" % (d + 1, hi))
    else:
        a.e("s_mov_b32 s%d, s%d" % (d, lo))
        a.e("s_mov_b32 s%d, s%d" % (d + 1, hi))
    a.e("s_mov_b32 s%d, 0x%x" % (d + 2, nbytes))
    a.e("s_mov_b32 s%d, 0x00020000" % (d + 3))


def kernel_head(a, name):
    a.lines.append(".globl %s" % name)
    a.lines.append(".p2align 8")
    a.lines.append(".type %s,@function" % name)
    a.label(name)


def descriptor(name, vgpr, accum, sgpr=102):
    return """.amdhsa_kernel %s
  .amdhsa_next_free_vgpr %d
  .amdhsa_next_free_sgpr %d
  .amdhsa_accum_offset %d
  .amdhsa_group_segment_fixed_size 0
  .amdhsa_kernarg_size 104
  .amdhsa_user_sgpr_count 2
  .amdhsa_user_sgpr_kernarg_segment_ptr 1
  .amdhsa_system_sgpr_workgroup_id_x 1
.end_amdhsa_kernel
""" % (name, vgpr, sgpr, accum)


def gen_ln():
    a = Asm()
    kernel_head(a, "ln_kernel")
    a.e("s_cmp_ge_u32 s2, 256")
    a.e("s_cbranch_scc1 LN_END")
    a.e("s_load_dwordx2 s[4:5], s[0:1], 0")
    a.e("s_load_dwordx2 s[6:7], s[0:1], 96")
    a.e("v_lshrrev_b32 v1, 5, v0")
    a.e("s_lshl_b32 s3, s2, 3")
    a.e("v_add_u32 v1, s3, v1")
    a.e("v_and_b32 v2, 31, v0")
    a.e("v_mul_u32_u24 v3, 1152, v1")
    a.e("v_lshl_add_u32 v3, v2, 2, v3")
    a.e("v_lshrrev_b32 v60, 5, v1")
    a.e("v_mul_u32_u24 v60, 36864, v60")
    a.e("v_lshrrev_b32 v61, 3, v2")
    a.e("v_lshl_add_u32 v60, v61, 10, v60")
    a.e("v_bfe_u32 v61, v2, 2, 1")
    a.e("v_lshl_add_u32 v60, v61, 9, v60")
    a.e("v_and_b32 v61, 31, v1")
    a.e("v_lshl_add_u32 v60, v61, 4, v60")
    a.e("v_and_b32 v61, 3, v2")
    a.e("v_lshl_add_u32 v60, v61, 2, v60")
    a.e("s_waitcnt lgkmcnt(0)")
    srd(a, 8, 4, 5, S * D * 2)
    srd(a, 12, 6, 7, S * D * 2, WS_XN)
    srd(a, 16, 6, 7, S * D * 2, WS_Y)
    for j in range(9):
        a.e("buffer_load_dword v%d, v3, s[8:11], 0 offen offset:%d" % (10 + j, j * 128))
    a.e("s_mov_b32 s20, 0xffff0000")
    a.e("s_waitcnt vmcnt(0)")
    E = 20
    T = 40
    P = 10

    def reduce32(v, tmp):
        for x in (1, 2, 4, 8, 16):
            a.e("ds_swizzle_b32 v%d, v%d offset:0x%x" % (tmp, v, (x << 10) | 0x1F))
            a.e("s_waitcnt lgkmcnt(0)")
            a.e("v_add_f32 v%d, v%d, v%d" % (v, v, tmp))

    def bf16r(v):
        a.e("v_cvt_pk_bf16_f32 v%d, v%d, v%d" % (v, v, v))
        a.e("v_lshlrev_b32 v%d, 16, v%d" % (v, v))

    def ln_pass(srd_out):
        for j in range(9):
            a.e("v_lshlrev_b32 v%d, 16, v%d" % (E + 2 * j, P + j))
            a.e("v_and_b32 v%d, s20, v%d" % (E + 2 * j + 1, P + j))
        a.e("v_add_f32 v4, v%d, v%d" % (E, E + 1))
        a.e("v_add_f32 v5, v%d, v%d" % (E + 2, E + 3))
        for j in range(4, 18, 2):
            a.e("v_add_f32 v4, v4, v%d" % (E + j))
            a.e("v_add_f32 v5, v5, v%d" % (E + j + 1))
        a.e("v_add_f32 v4, v4, v5")
        reduce32(4, 5)
        a.e("v_mul_f32 v4, %s, v4" % f2h(1.0 / D))
        for j in range(18):
            a.e("v_sub_f32 v%d, v%d, v4" % (T + j, E + j))
        a.e("v_mul_f32 v6, v%d, v%d" % (T, T))
        a.e("v_mul_f32 v7, v%d, v%d" % (T + 1, T + 1))
        for j in range(2, 18, 2):
            a.e("v_fmac_f32 v6, v%d, v%d" % (T + j, T + j))
            a.e("v_fmac_f32 v7, v%d, v%d" % (T + j + 1, T + j + 1))
        a.e("v_add_f32 v6, v6, v7")
        reduce32(6, 7)
        a.e("v_mul_f32 v6, %s, v6" % f2h(1.0 / D))
        bf16r(4)
        bf16r(6)
        a.e("v_add_f32 v6, %s, v6" % f2h(1e-5))
        bf16r(6)
        a.e("v_sqrt_f32 v6, v6")
        a.e("s_nop 0")
        bf16r(6)
        a.e("v_rcp_f32 v6, v6")
        for j in range(9):
            a.e("v_sub_f32 v%d, v%d, v4" % (T + 2 * j, E + 2 * j))
            a.e("v_sub_f32 v%d, v%d, v4" % (T + 2 * j + 1, E + 2 * j + 1))
            a.e("v_cvt_pk_bf16_f32 v8, v%d, v%d" % (T + 2 * j, T + 2 * j + 1))
            a.e("v_lshlrev_b32 v%d, 16, v8" % (T + 2 * j))
            a.e("v_and_b32 v%d, s20, v8" % (T + 2 * j + 1))
            a.e("v_mul_f32 v%d, v%d, v6" % (T + 2 * j, T + 2 * j))
            a.e("v_mul_f32 v%d, v%d, v6" % (T + 2 * j + 1, T + 2 * j + 1))
            a.e("v_cvt_pk_bf16_f32 v%d, v%d, v%d" % (P + j, T + 2 * j, T + 2 * j + 1))
            a.e("s_mov_b32 s21, %d" % (j * 4096))
            a.e("buffer_store_dword v%d, v60, s[%d:%d], s21 offen" % (P + j, srd_out, srd_out + 3))

    ln_pass(12)
    ln_pass(16)
    a.label("LN_END")
    a.e("s_endpgm")
    return a.text(), descriptor("ln_kernel", 64, 64, 32)


KA_STAGE = 24576
KA_NBUF = 6


def afrag(rt, j):
    i = rt * 36 + j
    if i < 64:
        return "a[%d:%d]" % (4 * i, 4 * i + 3)
    i -= 64
    return "v[%d:%d]" % (224 + 4 * i, 224 + 4 * i + 3)


def gen_ka():
    a = Asm()
    kernel_head(a, "ka_kernel")
    a.e("s_cmp_ge_u32 s2, 256")
    a.e("s_cbranch_scc1 KA_END")
    a.e("s_lshr_b32 s26, s2, 3")
    a.e("s_cmp_ge_u32 s26, 30")
    a.e("s_cbranch_scc1 KA_END")
    a.stamp(0)
    a.e("s_and_b32 s24, s2, 1")
    a.e("s_mul_i32 s24, s24, 15")
    a.e("s_lshr_b32 s25, s26, 1")
    a.e("s_add_u32 s24, s24, s25")
    a.e("s_and_b32 s25, s2, 6")
    a.e("s_and_b32 s26, s26, 1")
    a.e("s_add_u32 s25, s25, s26")
    a.e("s_load_dwordx4 s[28:31], s[0:1], 24")
    a.e("s_load_dwordx4 s[32:35], s[0:1], 48")
    a.e("s_load_dwordx2 s[6:7], s[0:1], 96")
    a.e("v_lshrrev_b32 v1, 6, v0")
    a.e("v_and_b32 v2, 63, v0")
    a.e("s_nop 0")
    a.e("v_readfirstlane_b32 s26, v1")
    a.e("v_and_b32 v3, 31, v2")
    a.e("v_lshrrev_b32 v4, 5, v2")
    a.e("s_lshl_b32 s27, s25, 8")
    a.e("s_lshl_b32 s36, s26, 6")
    a.e("s_add_u32 s27, s27, s36")
    a.e("s_lshr_b32 s36, s27, 5")
    a.e("s_mul_i32 s36, s36, 36864")
    a.e("v_lshlrev_b32 v5, 4, v2")
    a.e("v_add_u32 v5, s36, v5")
    a.e("v_add_u32 v6, 36864, v5")
    a.e("s_mul_i32 s37, s26, 6144")
    a.e("s_waitcnt lgkmcnt(0)")
    a.e("s_cmp_ge_u32 s24, 6")
    a.e("s_cbranch_scc1 KA_G3")

    for path in (1, 3):
        a.vm = []
        if path == 3:
            a.label("KA_G3")
        if path == 1:
            srd(a, 8, 6, 7, S * D * 2, WS_XN)
            a.e("s_cmp_ge_u32 s24, 3")
            a.e("s_cselect_b32 s38, s30, s28")
            a.e("s_cselect_b32 s39, s31, s29")
            srd(a, 12, 38, 39, D * D * 2)
            srd(a, 16, 6, 7, 1152 * S * 2, WS_ABT)
            a.e("s_sub_u32 s40, s24, 3")
            a.e("s_cselect_b32 s40, s24, s40")
            a.e("s_mul_i32 s40, s40, %d" % (192 * 1152))
        else:
            srd(a, 8, 6, 7, S * D * 2, WS_Y)
            srd(a, 12, 32, 33, D * F * 2)
            srd(a, 16, 6, 7, S * F * 2, WS_H)
            srd(a, 20, 34, 35, F * 2)
            a.e("s_sub_u32 s41, s24, 6")
            a.e("s_mul_i32 s40, s41, 384")
        a.e("v_lshrrev_b32 v7, 3, v2")
        a.e("v_and_b32 v8, 7, v2")
        for i in range(6):
            a.e("s_mul_i32 s42, s26, 6")
            a.e("s_add_u32 s42, s42, %d" % i)
            if path == 1:
                a.e("s_lshr_b32 s43, s42, 3")
                a.e("s_and_b32 s42, s42, 7")
                a.e("s_lshl_b32 s42, s42, 3")
                a.e("v_add_u32 v9, s42, v7")
                a.e("v_lshrrev_b32 v16, 1, v9")
                a.e("v_and_b32 v16, 7, v16")
                a.e("v_xor_b32 v16, v16, v8")
                a.e("v_mul_u32_u24 v9, 1152, v9")
                a.e("v_lshl_add_u32 v9, v16, 4, v9")
                a.e("s_lshl_b32 s43, s43, 7")
                a.e("v_add_u32 v%d, s43, v9" % (10 + i))
            else:
                a.e("s_lshl_b32 s42, s42, 3")
                a.e("v_add_u32 v9, s42, v7")
                a.e("v_lshrrev_b32 v16, 1, v9")
                a.e("v_and_b32 v16, 1, v16")
                a.e("v_lshlrev_b32 v16, 2, v16")
                a.e("v_xor_b32 v16, v16, v8")
                a.e("v_mul_u32_u24 v9, 9216, v9")
                a.e("v_lshl_add_u32 v%d, v16, 4, v9" % (10 + i))
        if path == 1:
            a.e("v_lshrrev_b32 v9, 1, v3")
            a.e("v_and_b32 v9, 7, v9")
            a.e("v_xor_b32 v9, v9, v4")
            a.e("v_lshlrev_b32 v9, 4, v9")
            a.e("v_lshl_add_u32 v20, v3, 7, v9")
            for p in range(1, 4):
                a.e("v_xor_b32 v%d, %d, v20" % (20 + p, p << 5))
            rd_regs = [20, 21, 22, 23]
        else:
            a.e("v_lshrrev_b32 v9, 5, v2")
            a.e("v_lshlrev_b32 v9, 3, v9")
            a.e("v_bfe_u32 v16, v2, 2, 2")
            a.e("v_add_u32 v9, v9, v16")
            a.e("v_lshlrev_b32 v9, 7, v9")
            a.e("v_bfe_u32 v17, v2, 4, 1")
            a.e("v_lshlrev_b32 v17, 5, v17")
            a.e("v_and_b32 v18, 3, v2")
            a.e("v_lshl_add_u32 v17, v18, 3, v17")
            a.e("v_lshrrev_b32 v16, 1, v16")
            a.e("v_lshlrev_b32 v16, 6, v16")
            a.e("v_xor_b32 v17, v17, v16")
            a.e("v_add_u32 v20, v9, v17")
            a.e("v_xor_b32 v21, 64, v20")
            rd_regs = [20, 21]
        if path == 1:
            a.e("s_mul_i32 s42, s24, 192")
            a.e("v_add_u32 v24, s42, v3")
            a.e("v_lshlrev_b32 v24, 12, v24")
            a.e("v_lshl_add_u32 v24, v4, 4, v24")
            a.e("s_lshl_b32 s42, s27, 1")
            a.e("v_add_u32 v24, s42, v24")
        else:
            a.e("v_add_u32 v24, s27, v3")
            a.e("v_mul_u32_u24 v24, 9216, v24")
            a.e("v_lshl_add_u32 v24, v4, 4, v24")
            a.e("v_add_u32 v24, s40, v24")
            a.e("v_add_u32 v25, 294912, v24")
            a.e("v_lshlrev_b32 v26, 3, v4")
            a.e("v_add_u32 v26, s40, v26")
            a.e("s_mov_b32 s44, %s" % f2h(-2.0 * 1.4426950408889634 * 0.7978845608028654 * 0.044715))
            a.e("v_mov_b32 v27, %s" % f2h(-2.0 * 1.4426950408889634 * 0.7978845608028654))
            a.e("s_mov_b32 s45, 0xffff0000")

        def dma_stage(st):
            c, kb = st // 3, st % 3
            buf = st % KA_NBUF
            if path == 1:
                so = c * 64 * 1152 + kb * 384
            else:
                so = kb * 192 * 9216 + c * 128
            a.e("s_add_u32 s46, s40, 0x%x" % so)
            for i in range(6):
                a.e("s_add_u32 m0, s37, 0x%x" % (buf * KA_STAGE + i * 1024))
                a.e("s_nop 0")
                a.vmem("buffer_load_dwordx4 v%d, s[12:15], s46 offen lds" % (10 + i), "B%d" % st)

        def a_loads(kb):
            L = []
            for j in range(kb * 12, kb * 12 + 12):
                if j % 4 == 0:
                    L.append(("v", "s_mov_b32 s48, %d" % (j * 1024)))
                for rt in range(2):
                    L.append(("vm", "buffer_load_dwordx4 %s, v%d, s[8:11], s48 offen offset:%d"
                              % (afrag(rt, j), 5 + rt, (j % 4) * 1024), "A%d" % j))
            return L

        def dma_list(st):
            c, kb = st // 3, st % 3
            buf = st % KA_NBUF
            if path == 1:
                so = c * 64 * 1152 + kb * 384
            else:
                so = kb * 192 * 9216 + c * 128
            L = [("v", "s_add_u32 s46, s40, 0x%x" % so)]
            for i in range(6):
                L.append(("v", "s_add_u32 m0, s37, 0x%x" % (buf * KA_STAGE + i * 1024)))
                L.append(("v", "s_nop 0"))
                L.append(("vm", "buffer_load_dwordx4 v%d, s[12:15], s46 offen lds" % (10 + i), "B%d" % st))
            return L

        early = dma_list(0) + a_loads(0) + dma_list(1) + a_loads(1)
        late = dma_list(2) + a_loads(2) + dma_list(3) + dma_list(4) + dma_list(5)

        state = {"base": 0}

        def set_base(buf):
            nb = (buf // 2) * 2 * KA_STAGE
            if nb != state["base"]:
                d = nb - state["base"]
                for r in rd_regs:
                    if d > 0:
                        a.e("v_add_u32 v%d, 0x%x, v%d" % (r, d, r))
                    else:
                        a.e("v_subrev_u32 v%d, 0x%x, v%d" % (r, -d, r))
                state["base"] = nb

        def bfrag(sel, ct):
            return 64 + sel * 8 + ct * 4

        def reads(st, step, sel):
            buf = st % KA_NBUF
            set_base(buf)
            off = buf * KA_STAGE - state["base"]
            n = 0
            if path == 1:
                sub, p = step // 4, step % 4
                for ct in range(2):
                    r = bfrag(sel, ct)
                    a.e("ds_read_b128 v[%d:%d], v%d offset:%d"
                        % (r, r + 3, 20 + p, off + sub * 8192 + ct * 4096))
                    n += 1
            else:
                for ct in range(2):
                    r = bfrag(sel, ct)
                    for sec in range(2):
                        a.e("ds_read_b64_tr_b16 v[%d:%d], v%d offset:%d"
                            % (r + 2 * sec, r + 2 * sec + 1, 20 + ct, off + step * 2048 + sec * 512))
                        n += 1
            return n

        def acc(c, rt, ct):
            return 96 + (c % 2) * 64 + (rt * 2 + ct) * 16

        def epilogue(c):
            out = []
            if path == 3:
                for ct in range(2):
                    for g in range(4):
                        r = 28 + (ct * 4 + g) * 2
                        out.append(("vm", "buffer_load_dwordx2 v[%d:%d], v26, s[20:23], 0 offen offset:%d"
                                    % (r, r + 1, c * 128 + ct * 64 + g * 16), "bias%d" % c))
                out.append(("waitvm", "bias%d" % c))
            for ct in range(2):
                if path == 3:
                    for g in range(4):
                        r = 28 + (ct * 4 + g) * 2
                        for d in range(2):
                            out.append(("v", "v_lshlrev_b32 v%d, 16, v%d" % (44 + g * 4 + d * 2, r + d)))
                            out.append(("v", "v_and_b32 v%d, s45, v%d" % (44 + g * 4 + d * 2 + 1, r + d)))
                for rt in range(2):
                    A = acc(c, rt, ct)
                    for kp in range(2):
                        if path == 3:
                            for q in range(8):
                                x = A + kp * 8 + q
                                t = 80 + q
                                out.append(("v", "v_add_f32 v%d, v%d, v%d" % (x, x, 44 + kp * 8 + q)))
                            for q in range(8):
                                x = A + kp * 8 + q
                                t = 80 + q
                                out.append(("v", "v_mul_f32 v%d, v%d, v%d" % (t, x, x)))
                            for q in range(8):
                                t = 80 + q
                                out.append(("v", "v_fma_f32 v%d, v%d, s44, v27" % (t, t)))
                            for q in range(8):
                                x = A + kp * 8 + q
                                t = 80 + q
                                out.append(("v", "v_mul_f32 v%d, v%d, v%d" % (t, t, x)))
                            for q in range(8):
                                t = 80 + q
                                out.append(("t", "v_exp_f32 v%d, v%d" % (t, t)))
                            for q in range(8):
                                t = 80 + q
                                out.append(("v", "v_add_f32 v%d, 1.0, v%d" % (t, t)))
                            for q in range(8):
                                t = 80 + q
                                out.append(("t", "v_rcp_f32 v%d, v%d" % (t, t)))
                            for q in range(8):
                                x = A + kp * 8 + q
                                t = 80 + q
                                out.append(("v", "v_mul_f32 v%d, v%d, v%d" % (t, t, x)))
                            src = 80
                        else:
                            src = A + kp * 8
                        P = 88 + ((rt * 2 + kp) % 2) * 4
                        for q in range(4):
                            out.append(("v", "v_cvt_pk_bf16_f32 v%d, v%d, v%d" % (P + q, src + 2 * q, src + 2 * q + 1)))
                        out.append(("v", "s_nop 1"))
                        out.append(("v", "v_permlane32_swap_b32 v%d, v%d" % (P, P + 2)))
                        out.append(("v", "v_permlane32_swap_b32 v%d, v%d" % (P + 1, P + 3)))
                        if path == 1:
                            out.append(("v", "s_mov_b32 s47, 0x%x" % ((c * 64 + ct * 32) * 4096)))
                            out.append(("vm", "buffer_store_dwordx4 v[%d:%d], v24, s[16:19], s47 offen offset:%d"
                                        % (P, P + 3, rt * 64 + kp * 32), "st%d" % c))
                        else:
                            out.append(("vm", "buffer_store_dwordx4 v[%d:%d], v%d, s[16:19], 0 offen offset:%d"
                                        % (P, P + 3, 24 + rt, c * 128 + ct * 64 + kp * 32), "st%d" % c))
            return out

        fill = []

        def emit_fill(budget):
            while fill and budget > 0:
                f = fill.pop(0)
                if f[0] == "vm":
                    a.vmem(f[1], f[2])
                    budget -= 1
                elif f[0] == "waitvm":
                    a.wait_vm(f[1])
                    budget -= 1
                elif f[0] == "t":
                    a.e(f[1])
                    budget -= 2
                else:
                    a.e(f[1])
                    budget -= 1

        fill.extend(early)
        emit_fill(10 ** 9)
        a.wait_vm("B0")
        a.e("s_barrier")
        a.stamp(1)
        nrd = reads(0, 0, 0)
        sel = 0
        NST = 9
        for st in range(NST):
            c, kb = st // 3, st % 3
            for step in range(12):
                last = step == 11
                if not last:
                    n2 = reads(st, step + 1, sel ^ 1)
                    a.e("s_waitcnt lgkmcnt(%d)" % n2)
                else:
                    if st + 1 < NST:
                        a.wait_vm("B%d" % (st + 1), " lgkmcnt(0)")
                        a.e("s_barrier")
                        a.stamp(2 + st)
                        if st + KA_NBUF < NST:
                            if c == 0:
                                emit_fill(10 ** 9)
                            dma_stage(st + KA_NBUF)
                        reads(st + 1, 0, sel ^ 1)
                    else:
                        a.e("s_waitcnt lgkmcnt(0)")
                j = kb * 12 + step
                first = (kb == 0 and step == 0)
                if first:
                    emit_fill(10 ** 9)
                if c == 0:
                    a.wait_vm("A%d" % j)
                    if j == 0:
                        fill.extend(late)
                for rt in range(2):
                    for ct in range(2):
                        A = acc(c, rt, ct)
                        bf = "v[%d:%d]" % (bfrag(sel, ct), bfrag(sel, ct) + 3)
                        cin = "0" if first else "v[%d:%d]" % (A, A + 15)
                        if path == 1:
                            a.e("v_mfma_f32_32x32x16_bf16 v[%d:%d], %s, %s, %s" % (A, A + 15, afrag(rt, j), bf, cin))
                        else:
                            a.e("v_mfma_f32_32x32x16_bf16 v[%d:%d], %s, %s, %s" % (A, A + 15, bf, afrag(rt, j), cin))
                        emit_fill(6 if path == 3 else 3)
                sel ^= 1
                if kb == 0 and step == 3 and c > 0:
                    fill.extend(epilogue(c - 1))
        emit_fill(10 ** 9)
        a.e("s_nop 7")
        a.e("s_nop 7")
        a.stamp(10)
        fill.extend(epilogue(2))
        emit_fill(10 ** 9)
        a.stamp_flush(11, 6, 7, 0)
        a.e("s_endpgm")
    a.label("KA_END")
    a.e("s_endpgm")
    return a.text(), descriptor("ka_kernel", 512, 256, 102)


def gen_ka2():
    a = Asm()
    kernel_head(a, "ka_kernel")
    a.e("s_cmp_ge_u32 s2, 256")
    a.e("s_cbranch_scc1 KA_END")
    a.e("s_lshr_b32 s26, s2, 3")
    a.e("s_cmp_ge_u32 s26, 30")
    a.e("s_cbranch_scc1 KA_END")
    a.stamp(0)
    a.e("s_and_b32 s24, s2, 1")
    a.e("s_mul_i32 s24, s24, 15")
    a.e("s_lshr_b32 s25, s26, 1")
    a.e("s_add_u32 s24, s24, s25")
    a.e("s_and_b32 s25, s2, 6")
    a.e("s_and_b32 s26, s26, 1")
    a.e("s_add_u32 s25, s25, s26")
    a.e("s_load_dwordx4 s[28:31], s[0:1], 24")
    a.e("s_load_dwordx4 s[32:35], s[0:1], 48")
    a.e("s_load_dwordx2 s[6:7], s[0:1], 96")
    a.e("v_lshrrev_b32 v1, 6, v0")
    a.e("v_and_b32 v2, 63, v0")
    a.e("s_nop 0")
    a.e("v_readfirstlane_b32 s26, v1")
    a.e("v_and_b32 v3, 31, v2")
    a.e("v_lshrrev_b32 v4, 5, v2")
    a.e("s_nop 1")
    a.e("s_lshl_b32 s27, s25, 3")
    a.e("s_add_u32 s27, s27, s26")
    a.e("s_mul_i32 s36, s27, 36864")
    a.e("v_lshlrev_b32 v5, 4, v2")
    a.e("v_add_u32 v5, s36, v5")
    a.e("s_lshl_b32 s27, s27, 5")
    a.e("s_mul_i32 s37, s26, 3072")
    a.e("s_waitcnt lgkmcnt(0)")
    a.e("s_cmp_ge_u32 s24, 6")
    a.e("s_cbranch_scc1 KA_G3")

    ACC = 128
    AR = 32
    NAR = 12
    BF = 80

    for path in (1, 3):
        a.vm = []
        if path == 3:
            a.label("KA_G3")
        if path == 1:
            srd(a, 8, 6, 7, S * D * 2, WS_XN)
            a.e("s_cmp_ge_u32 s24, 3")
            a.e("s_cselect_b32 s38, s30, s28")
            a.e("s_cselect_b32 s39, s31, s29")
            srd(a, 12, 38, 39, D * D * 2)
            srd(a, 16, 6, 7, 1152 * S * 2, WS_ABT)
            a.e("s_sub_u32 s40, s24, 3")
            a.e("s_cselect_b32 s40, s24, s40")
            a.e("s_mul_i32 s40, s40, %d" % (192 * 1152))
        else:
            srd(a, 8, 6, 7, S * D * 2, WS_Y)
            srd(a, 12, 32, 33, D * F * 2)
            srd(a, 16, 6, 7, S * F * 2, WS_H)
            srd(a, 20, 34, 35, F * 2)
            a.e("s_sub_u32 s41, s24, 6")
            a.e("s_mul_i32 s40, s41, 384")
        def a_load(j):
            r = AR + (j % NAR) * 4
            L = []
            if j % 4 == 0:
                L.append(("v", "s_mov_b32 s48, %d" % (j * 1024)))
            L.append(("vm", "buffer_load_dwordx4 v[%d:%d], v5, s[8:11], s48 offen offset:%d"
                      % (r, r + 3, (j % 4) * 1024), "A%d" % j))
            return L
        a.e("s_mul_i32 s42, s26, 192")
        for i in range(3):
            a.e("v_add_u32 v9, s42, v2")
            if i:
                a.e("v_add_u32 v9, %d, v9" % (64 * i))
            if path == 1:
                a.e("v_lshrrev_b32 v16, 3, v9")
                a.e("v_lshrrev_b32 v17, 1, v16")
                a.e("v_xor_b32 v17, v17, v9")
                a.e("v_and_b32 v17, 7, v17")
                a.e("v_mul_u32_u24 v16, 1152, v16")
                a.e("v_lshl_add_u32 v%d, v17, 4, v16" % (10 + i))
            else:
                a.e("v_mul_u32_u24 v16, 2731, v9")
                a.e("v_lshrrev_b32 v16, 16, v16")
                a.e("v_mul_u32_u24 v17, 24, v16")
                a.e("v_sub_u32 v17, v9, v17")
                a.e("v_bfe_u32 v18, v16, 1, 1")
                a.e("v_lshlrev_b32 v18, 2, v18")
                a.e("v_xor_b32 v17, v17, v18")
                a.e("v_mul_u32_u24 v16, 9216, v16")
                a.e("v_lshl_add_u32 v%d, v17, 4, v16" % (10 + i))

        def dma_list(st):
            buf = st % KA_NBUF
            so = st * 128 if path == 1 else st * 64 * 9216
            L = [("v", "s_add_u32 s46, s40, 0x%x" % so)]
            for i in range(3):
                L.append(("v", "s_add_u32 m0, s37, 0x%x" % (buf * KA_STAGE + i * 1024)))
                L.append(("v", "s_nop 0"))
                L.append(("vm", "buffer_load_dwordx4 v%d, s[12:15], s46 offen lds" % (10 + i), "B%d" % st))
            return L

        fill = []

        def emit_fill(budget):
            while fill and budget > 0:
                f = fill.pop(0)
                if f[0] == "vm":
                    a.vmem(f[1], f[2])
                    budget -= 1
                elif f[0] == "waitvm":
                    a.wait_vm(f[1])
                    budget -= 1
                elif f[0] == "t":
                    a.e(f[1])
                    budget -= 2
                else:
                    a.e(f[1])
                    budget -= 1

        fill.extend(dma_list(0))
        for j in range(4):
            fill.extend(a_load(j))
        fill.extend(dma_list(1))
        emit_fill(10 ** 9)
        late = []
        for j in range(4, 8):
            late.extend(a_load(j))
        late.extend(dma_list(2))
        for j in range(8, 12):
            late.extend(a_load(j))
        for st in range(3, 6):
            late.extend(dma_list(st))

        if path == 1:
            a.e("v_lshrrev_b32 v9, 1, v3")
            a.e("v_and_b32 v9, 7, v9")
            a.e("v_xor_b32 v9, v9, v4")
            a.e("v_lshlrev_b32 v9, 4, v9")
            a.e("v_lshl_add_u32 v20, v3, 7, v9")
            for p in range(1, 4):
                a.e("v_xor_b32 v%d, %d, v20" % (20 + p, p << 5))
            rd_regs = [20, 21, 22, 23]
        else:
            a.e("v_lshrrev_b32 v9, 5, v2")
            a.e("v_lshlrev_b32 v9, 3, v9")
            a.e("v_bfe_u32 v16, v2, 2, 2")
            a.e("v_add_u32 v9, v9, v16")
            a.e("v_mul_u32_u24 v9, 384, v9")
            a.e("v_bfe_u32 v17, v2, 4, 1")
            a.e("v_lshlrev_b32 v17, 5, v17")
            a.e("v_and_b32 v18, 3, v2")
            a.e("v_lshl_add_u32 v17, v18, 3, v17")
            a.e("v_lshrrev_b32 v16, 1, v16")
            a.e("v_lshlrev_b32 v16, 6, v16")
            a.e("v_xor_b32 v17, v17, v16")
            a.e("v_add_u32 v20, v9, v17")
            a.e("v_xor_b32 v17, 64, v17")
            a.e("v_add_u32 v21, v9, v17")
            rd_regs = [20, 21]
        if path == 1:
            a.e("s_mul_i32 s42, s24, 192")
            a.e("v_add_u32 v24, s42, v3")
            a.e("v_lshlrev_b32 v24, 12, v24")
            a.e("v_lshl_add_u32 v24, v4, 4, v24")
            a.e("s_lshl_b32 s42, s27, 1")
            a.e("v_add_u32 v24, s42, v24")
        else:
            a.e("v_add_u32 v24, s27, v3")
            a.e("v_mul_u32_u24 v24, 9216, v24")
            a.e("v_lshl_add_u32 v24, v4, 4, v24")
            a.e("v_add_u32 v24, s40, v24")
            a.e("v_lshlrev_b32 v26, 3, v4")
            a.e("v_add_u32 v26, s40, v26")
            a.e("s_mov_b32 s44, %s" % f2h(-2.0 * 1.4426950408889634 * 0.7978845608028654 * 0.044715))
            a.e("v_mov_b32 v27, %s" % f2h(-2.0 * 1.4426950408889634 * 0.7978845608028654))
            a.e("s_mov_b32 s45, 0xffff0000")

        state = {"base": 0}

        def set_base(buf):
            nb = (buf // 2) * 2 * KA_STAGE
            if nb != state["base"]:
                d = nb - state["base"]
                for r in rd_regs:
                    if d > 0:
                        a.e("v_add_u32 v%d, 0x%x, v%d" % (r, d, r))
                    else:
                        a.e("v_subrev_u32 v%d, 0x%x, v%d" % (r, -d, r))
                state["base"] = nb

        def bfrag(sel, ct):
            return BF + sel * 24 + ct * 4

        def read_list(st, p, sel):
            buf = st % KA_NBUF
            set_base(buf)
            off = buf * KA_STAGE - state["base"]
            L = []
            for ct in range(6):
                r = bfrag(sel, ct)
                if path == 1:
                    L.append("ds_read_b128 v[%d:%d], v%d offset:%d" % (r, r + 3, 20 + p, off + ct * 4096))
                else:
                    for sec in range(2):
                        L.append("ds_read_b64_tr_b16 v[%d:%d], v%d offset:%d"
                                 % (r + 2 * sec, r + 2 * sec + 1, 20 + (ct & 1),
                                    off + p * 6144 + sec * 1536 + (ct >> 1) * 128))
            return L

        def mfma(ct, j, bf):
            A = ACC + ct * 16
            af = "v[%d:%d]" % (AR + (j % NAR) * 4, AR + (j % NAR) * 4 + 3)
            bf = "v[%d:%d]" % (bf, bf + 3)
            cin = "0" if j == 0 else "v[%d:%d]" % (A, A + 15)
            if path == 1:
                a.e("v_mfma_f32_32x32x16_bf16 v[%d:%d], %s, %s, %s" % (A, A + 15, af, bf, cin))
            else:
                a.e("v_mfma_f32_32x32x16_bf16 v[%d:%d], %s, %s, %s" % (A, A + 15, bf, af, cin))

        BIAS = 224

        def bias_loads(ct):
            L = []
            for g in range(4):
                r = BIAS + (ct % 4) * 8 + g * 2
                L.append(("vm", "buffer_load_dwordx2 v[%d:%d], v26, s[20:23], 0 offen offset:%d"
                          % (r, r + 1, ct * 64 + g * 16), "bias%d" % ct))
            return L

        def epilogue(ct):
            out = []
            A = ACC + ct * 16
            if path == 3:
                out.append(("waitvm", "bias%d" % ct))
            for kp in range(2):
                if path == 3:
                    T = TMP
                    for q in range(8):
                        r = BIAS + (ct % 4) * 8 + (kp * 2 + q // 4) * 2 + (q % 4) // 2
                        if q % 2 == 0:
                            out.append(("v", "v_lshlrev_b32 v%d, 16, v%d" % (T + q, r)))
                        else:
                            out.append(("v", "v_and_b32 v%d, s45, v%d" % (T + q, r)))
                    U = A + kp * 8
                    for q in range(8):
                        out.append(("v", "v_add_f32 v%d, v%d, v%d" % (U + q, U + q, T + q)))
                    for q in range(8):
                        out.append(("v", "v_mul_f32 v%d, v%d, v%d" % (T + q, U + q, U + q)))
                    for q in range(8):
                        out.append(("v", "v_fma_f32 v%d, v%d, s44, v27" % (T + q, T + q)))
                    for q in range(8):
                        out.append(("v", "v_mul_f32 v%d, v%d, v%d" % (T + q, T + q, U + q)))
                    for q in range(8):
                        out.append(("t", "v_exp_f32 v%d, v%d" % (T + q, T + q)))
                    for q in range(8):
                        out.append(("v", "v_add_f32 v%d, 1.0, v%d" % (T + q, T + q)))
                    for q in range(8):
                        out.append(("t", "v_rcp_f32 v%d, v%d" % (T + q, T + q)))
                    for q in range(8):
                        out.append(("v", "v_mul_f32 v%d, v%d, v%d" % (U + q, T + q, U + q)))
                src = A + kp * 8
                P = A + kp * 8
                for q in range(4):
                    out.append(("v", "v_cvt_pk_bf16_f32 v%d, v%d, v%d" % (P + q, src + 2 * q, src + 2 * q + 1)))
                out.append(("v", "s_nop 1"))
                out.append(("v", "v_permlane32_swap_b32 v%d, v%d" % (P, P + 2)))
                out.append(("v", "v_permlane32_swap_b32 v%d, v%d" % (P + 1, P + 3)))
                if path == 1:
                    out.append(("v", "s_mov_b32 s47, 0x%x" % (ct * 32 * 4096)))
                    out.append(("vm", "buffer_store_dwordx4 v[%d:%d], v24, s[16:19], s47 offen offset:%d"
                                % (P, P + 3, kp * 32), "st"))
                else:
                    out.append(("vm", "buffer_store_dwordx4 v[%d:%d], v24, s[16:19], 0 offen offset:%d"
                                % (P, P + 3, ct * 64 + kp * 32), "st"))
            return out

        TMP = 112

        a.wait_vm("B0")
        a.e("s_barrier")
        a.stamp(1)
        for r in read_list(0, 0, 0):
            a.e(r)
        fill.extend(late)
        sel = 0
        NK = 6
        for st in range(NK):
            for p in range(4):
                j = st * 4 + p
                last = p == 3
                rds = []
                if not last:
                    a.e("s_waitcnt lgkmcnt(0)")
                    rds = read_list(st, p + 1, sel ^ 1)
                else:
                    if st + 1 < NK:
                        a.wait_vm("B%d" % (st + 1), " lgkmcnt(0)")
                        a.e("s_barrier")
                        a.stamp(2 + st)
                        if st + KA_NBUF < 9:
                            emit_fill(10 ** 9)
                            fill.extend(dma_list(st + KA_NBUF))
                        rds = read_list(st + 1, 0, sel ^ 1)
                    else:
                        a.wait_vm("B8", " lgkmcnt(0)")
                        a.e("s_barrier")
                        a.stamp(2 + st)
                a.wait_vm("A%d" % j)
                per = (len(rds) + 5) // 6
                for ct in range(6):
                    mfma(ct, j, bfrag(sel, ct))
                    for _ in range(per):
                        if rds:
                            a.e(rds.pop(0))
                    emit_fill(3)
                if j >= 2:
                    emit_fill(10 ** 9)
                if j + NAR < 36:
                    fill.extend(a_load(j + NAR))
                    if j >= 2:
                        emit_fill(10 ** 9)
                if path == 3 and j == 20:
                    for ct in range(4):
                        fill.extend(bias_loads(ct))
                sel ^= 1
        emit_fill(10 ** 9)
        def rd2(ct, g):
            st = NK + g
            buf = st % KA_NBUF
            set_base(buf)
            off = buf * KA_STAGE - state["base"]
            L = []
            for p in range(4):
                r = BF + (grp[0] % 2) * 16 + p * 4
                if path == 1:
                    L.append("ds_read_b128 v[%d:%d], v%d offset:%d" % (r, r + 3, 20 + p, off + ct * 4096))
                else:
                    for sec in range(2):
                        L.append("ds_read_b64_tr_b16 v[%d:%d], v%d offset:%d"
                                 % (r + 2 * sec, r + 2 * sec + 1, 20 + (ct & 1),
                                    off + p * 6144 + sec * 1536 + (ct >> 1) * 128))
            grp[0] += 1
            return L

        grp = [0]
        seq = [(ct, g) for ct in range(6) for g in range(3)]
        for r in rd2(*seq[0]):
            a.e(r)
        for n, (ct, g) in enumerate(seq):
            a.e("s_waitcnt lgkmcnt(0)")
            cur = BF + (n % 2) * 16
            rds = rd2(*seq[n + 1]) if n + 1 < len(seq) else []
            per = (len(rds) + 3) // 4
            for p in range(4):
                j = (NK + g) * 4 + p
                if ct == 0:
                    a.wait_vm("A%d" % j)
                mfma(ct, j, cur + p * 4)
                for _ in range(per):
                    if rds:
                        a.e(rds.pop(0))
                emit_fill(8)
            if g == 1 and ct > 0:
                fill.extend(epilogue(ct - 1))
                if path == 3 and ct + 3 < 6:
                    fill.extend(bias_loads(ct + 3))
        a.stamp(10)
        emit_fill(10 ** 9)
        a.e("s_nop 7")
        a.e("s_nop 7")
        fill.extend(epilogue(5))
        emit_fill(10 ** 9)
        a.stamp_flush(11, 6, 7, 0)
        a.e("s_endpgm")
    a.label("KA_END")
    a.e("s_endpgm")
    return a.text(), descriptor("ka_kernel", 256, 256, 102)


KB_STAGE = 34816
KB_BOFF = 16384


def gen_kb():
    a = Asm()
    kernel_head(a, "kb_kernel")
    a.e("s_cmp_ge_u32 s2, 256")
    a.e("s_cbranch_scc1 KB_END")
    a.stamp(0)
    a.e("s_and_b32 s24, s2, 7")
    a.e("s_lshr_b32 s25, s24, 1")
    a.e("s_and_b32 s24, s24, 1")
    a.e("s_lshr_b32 s26, s2, 3")
    a.e("s_and_b32 s27, s26, 3")
    a.e("s_lshr_b32 s26, s26, 2")
    a.e("s_lshl_b32 s24, s24, 3")
    a.e("s_add_u32 s26, s26, s24")
    a.e("s_load_dwordx4 s[28:31], s[0:1], 8")
    a.e("s_load_dwordx2 s[32:33], s[0:1], 64")
    a.e("s_load_dwordx2 s[6:7], s[0:1], 96")
    a.e("v_lshrrev_b32 v1, 6, v0")
    a.e("v_and_b32 v2, 63, v0")
    a.e("s_nop 0")
    a.e("v_readfirstlane_b32 s50, v1")
    a.e("s_nop 3")
    a.e("s_and_b32 s34, s50, 3")
    a.e("v_and_b32 v3, 15, v2")
    a.e("v_lshrrev_b32 v4, 4, v2")
    a.e("v_lshrrev_b32 v7, 3, v2")
    a.e("v_and_b32 v8, 7, v2")
    a.e("s_lshl_b32 s35, s26, 7")
    a.e("s_lshl_b32 s36, s34, 5")
    a.e("s_add_u32 s36, s36, s35")
    a.e("v_add_u32 v5, s36, v3")
    a.e("v_mul_u32_u24 v5, 2304, v5")
    a.e("v_lshl_add_u32 v5, v4, 4, v5")
    a.e("s_mul_i32 s37, s27, 576")
    a.e("s_mul_i32 s38, s25, 0x%x" % P_BYTES)
    a.e("s_add_u32 s37, s37, s38")
    a.e("v_add_u32 v5, s37, v5")
    a.e("v_add_u32 v6, 36864, v5")
    a.e("v_lshrrev_b32 v9, 1, v3")
    a.e("v_xor_b32 v9, v9, v4")
    a.e("v_lshlrev_b32 v9, 4, v9")
    a.e("v_lshl_add_u32 v9, v3, 7, v9")
    a.e("s_lshl_b32 s38, s34, 12")
    for buf in range(4):
        a.e("s_add_u32 s39, s38, 0x%x" % (buf * KB_STAGE))
        a.e("v_add_u32 v%d, s39, v9" % (40 + buf * 2))
        a.e("v_xor_b32 v%d, 64, v%d" % (40 + buf * 2 + 1, 40 + buf * 2))
    a.e("s_waitcnt lgkmcnt(0)")
    srd(a, 16, 6, 7, 4 * P_BYTES, WS_P)
    a.e("s_cmp_ge_u32 s25, 2")
    a.e("s_cbranch_scc1 KB_G4")

    for path in (2, 4):
        a.vm = []
        if path == 4:
            a.label("KB_G4")
        nst = 32 if path == 2 else 36
        lda = 4096 if path == 2 else 9216
        if path == 2:
            a.e("s_cmp_eq_u32 s25, 1")
            a.e("s_cselect_b32 s38, s30, s28")
            a.e("s_cselect_b32 s39, s31, s29")
            srd(a, 8, 38, 39, S * S * 2)
            srd(a, 12, 6, 7, 1152 * S * 2, WS_ABT)
            a.e("s_mov_b32 s40, 0")
            a.e("s_mov_b32 s41, 0")
            kb_step = 128
        else:
            srd(a, 8, 6, 7, S * F * 2, WS_H)
            srd(a, 12, 32, 33, F * D * 2)
            a.e("s_sub_u32 s38, s25, 2")
            a.e("s_mul_i32 s40, s38, 4608")
            a.e("s_mul_i32 s41, s38, %d" % (2304 * 1152))
            kb_step = 64 * 1152
        for i in range(4):
            a.e("s_lshl_b32 s42, s34, 5")
            a.e("s_add_u32 s42, s42, %d" % (8 * i))
            a.e("v_add_u32 v10, s42, v7")
            a.e("v_lshrrev_b32 v11, 1, v10")
            a.e("v_and_b32 v11, 7, v11")
            a.e("v_xor_b32 v11, v11, v8")
            a.e("v_add_u32 v10, s35, v10")
            a.e("v_mul_u32_u24 v10, %d, v10" % lda)
            a.e("v_lshl_add_u32 v%d, v11, 4, v10" % (20 + i))
        a.e("s_mul_i32 s42, s34, 18")
        a.e("s_lshr_b32 s42, s42, 2")
        a.e("s_lshl_b32 s43, s42, 10")
        a.e("s_add_u32 s43, s43, %d" % KB_BOFF)
        a.e("s_lshl_b32 s44, s34, 12")
        a.e("s_lshl_b32 s42, s42, 6")
        for i in range(5):
            a.e("v_add_u32 v10, s42, v2")
            if i:
                a.e("v_add_u32 v10, %d, v10" % (64 * i))
            if path == 2:
                a.e("v_lshrrev_b32 v11, 3, v10")
                a.e("v_lshrrev_b32 v12, 1, v11")
                a.e("v_and_b32 v12, 7, v12")
                a.e("v_xor_b32 v12, v12, v8")
                a.e("s_mul_i32 s45, s27, 144")
                a.e("s_mul_i32 s46, s25, 576")
                a.e("s_add_u32 s45, s45, s46")
                a.e("v_add_u32 v11, s45, v11")
                a.e("v_lshlrev_b32 v11, 12, v11")
                a.e("v_lshl_add_u32 v%d, v12, 4, v11" % (24 + i))
            else:
                a.e("v_mul_u32_u24 v11, 3641, v10")
                a.e("v_lshrrev_b32 v11, 16, v11")
                a.e("v_mul_u32_u24 v12, 18, v11")
                a.e("v_sub_u32 v12, v10, v12")
                a.e("v_and_b32 v13, 0x33, v11")
                a.e("v_bfe_u32 v14, v11, 2, 1")
                a.e("v_lshl_add_u32 v13, v14, 3, v13")
                a.e("v_bfe_u32 v14, v11, 3, 1")
                a.e("v_lshl_add_u32 v13, v14, 2, v13")
                a.e("v_mul_u32_u24 v13, 1152, v13")
                a.e("v_lshl_add_u32 v13, v12, 4, v13")
                a.e("s_mul_i32 s45, s27, 288")
                a.e("v_add_u32 v%d, s45, v13" % (24 + i))
        if path == 2:
            for buf in range(4):
                a.e("v_add_u32 v%d, 0x%x, v9" % (48 + buf * 2, buf * KB_STAGE + KB_BOFF))
                a.e("v_xor_b32 v%d, 64, v%d" % (48 + buf * 2 + 1, 48 + buf * 2))
        else:
            a.e("v_bfe_u32 v10, v2, 2, 2")
            a.e("v_bfe_u32 v11, v2, 4, 1")
            a.e("v_lshl_add_u32 v10, v11, 2, v10")
            a.e("v_bfe_u32 v11, v2, 5, 1")
            a.e("v_lshl_add_u32 v10, v11, 4, v10")
            a.e("v_mul_u32_u24 v10, 288, v10")
            a.e("v_and_b32 v11, 3, v2")
            a.e("v_lshl_add_u32 v10, v11, 3, v10")
            for buf in range(4):
                a.e("v_add_u32 v%d, 0x%x, v10" % (48 + buf * 2, buf * KB_STAGE + KB_BOFF))

        def dma(buf, tag):
            for i in range(4):
                a.e("s_add_u32 m0, s44, 0x%x" % (buf * KB_STAGE + i * 1024))
                a.e("s_nop 0")
                if "vgprld" in EXP:
                    a.vmem("buffer_load_dwordx4 v[%d:%d], v%d, s[8:11], s40 offen" % (232 + 4 * i, 235 + 4 * i, 20 + i), tag)
                else:
                    a.vmem("buffer_load_dwordx4 v%d, s[8:11], s40 offen lds" % (20 + i), tag)
            for i in range(5):
                a.e("s_add_u32 m0, s43, 0x%x" % (buf * KB_STAGE + i * 1024))
                a.e("s_nop 0")
                if "vgprld" in EXP:
                    a.vmem("buffer_load_dwordx4 v[%d:%d], v%d, s[12:15], s41 offen" % (232 + 4 * i, 235 + 4 * i, 24 + i), tag)
                else:
                    a.vmem("buffer_load_dwordx4 v%d, s[12:15], s41 offen lds" % (24 + i), tag)
            a.e("s_add_u32 s40, s40, 128")
            a.e("s_add_u32 s41, s41, 0x%x" % kb_step)
            if "kwrap" in EXP:
                a.e("s_and_b32 s40, s40, 1023")
                if path == 2:
                    a.e("s_and_b32 s41, s41, 1023")
                else:
                    a.e("s_cmp_eq_u32 s40, 0")
                    a.e("s_cselect_b32 s41, 0, s41")
            if "kfix" in EXP:
                a.e("s_mov_b32 s40, 0")
                a.e("s_mov_b32 s41, 0")

        def fa(s, rt):
            return 64 + s * 48 + rt * 4

        def fb(s, ct):
            return 64 + s * 48 + 8 + ct * 4

        ACC = 160

        def read_list(buf, ks, s):
            L = []
            for rt in range(2):
                L.append("ds_read_b128 v[%d:%d], v%d offset:%d" % (fa(s, rt), fa(s, rt) + 3, 40 + buf * 2 + ks, rt * 2048))
            for ct in range(9):
                if path == 2:
                    L.append("ds_read_b128 v[%d:%d], v%d offset:%d" % (fb(s, ct), fb(s, ct) + 3, 48 + buf * 2 + ks, ct * 2048))
                else:
                    for sec in range(2):
                        L.append("ds_read_b64_tr_b16 v[%d:%d], v%d offset:%d"
                                 % (fb(s, ct) + 2 * sec, fb(s, ct) + 2 * sec + 1, 48 + buf * 2,
                                    ks * 9216 + sec * 2304 + ct * 32))
            return L

        def mfmas(s, rds, first=False):
            rds = list(rds)
            if "nords" in EXP:
                rds = []
            per = (len(rds) + 17) // 18
            for ct in range(9):
                for rt in range(2):
                    A = ACC + (ct * 2 + rt) * 4
                    cin = "0" if first else "v[%d:%d]" % (A, A + 3)
                    if "nomfma" not in EXP:
                        a.e("v_mfma_f32_16x16x32_bf16 v[%d:%d], v[%d:%d], v[%d:%d], %s"
                            % (A, A + 3, fb(s, ct), fb(s, ct) + 3, fa(s, rt), fa(s, rt) + 3, cin))
                    for _ in range(per):
                        if rds:
                            a.e(rds.pop(0))
            assert not rds

        a.e("s_cmp_lt_u32 s50, 4")
        a.e("s_cbranch_scc1 KB_CONS%d" % path)
        for st in range(4):
            dma(st, "S%d" % st)
        a.wait_vm("S0")
        a.e("s_barrier")
        niter = nst // 4 - 1
        a.e("s_mov_b32 s47, %d" % niter)
        lab = "KB_PLOOP%d" % path
        a.label(lab)
        for buf in range(4):
            a.e("s_waitcnt vmcnt(18)")
            a.e("s_barrier")
            dma(buf, "x")
        a.e("s_sub_u32 s47, s47, 1")
        a.e("s_cmp_lg_u32 s47, 0")
        a.e("s_cbranch_scc1 %s" % lab)
        for w in (18, 9, 0):
            a.e("s_waitcnt vmcnt(%d)" % w)
            a.e("s_barrier")
        a.e("s_endpgm")
        a.label("KB_CONS%d" % path)
        for i in range(72):
            a.e("v_mov_b32 v%d, 0" % (ACC + i))
        a.e("s_barrier")
        a.stamp(1)
        for r in read_list(0, 0, 0):
            a.e(r)

        def stage_body(buf, last):
            a.e("s_waitcnt lgkmcnt(0)")
            mfmas(0, read_list(buf, 1, 1))
            if not last:
                a.e("s_waitcnt lgkmcnt(0)")
                a.e("s_barrier")
                mfmas(1, read_list((buf + 1) % 4, 0, 0))
            else:
                a.e("s_waitcnt lgkmcnt(0)")
                mfmas(1, [])

        a.e("s_mov_b32 s47, %d" % niter)
        lab = "KB_LOOP%d" % path
        a.label(lab)
        for buf in range(4):
            stage_body(buf, False)
        a.e("s_sub_u32 s47, s47, 1")
        a.e("s_cmp_lg_u32 s47, 0")
        a.e("s_cbranch_scc1 %s" % lab)
        stage_body(0, False)
        stage_body(1, False)
        stage_body(2, False)
        stage_body(3, True)
        a.stamp(2)
        a.e("s_nop 7")
        a.e("s_nop 7")
        for ct in range(9):
            for rt in range(2):
                A = ACC + (ct * 2 + rt) * 4
                a.e("buffer_store_dwordx4 v[%d:%d], v%d, s[16:19], 0 offen offset:%d" % (A, A + 3, 5 + rt, ct * 64))
        a.stamp_flush(3, 6, 7, 1)
        a.e("s_endpgm")
    a.label("KB_END")
    a.e("s_endpgm")
    return a.text(), descriptor("kb_kernel", 256, 256, 102)


def gen_kc():
    a = Asm()
    kernel_head(a, "kc_kernel")
    a.e("s_cmp_ge_u32 s2, 576")
    a.e("s_cbranch_scc1 KC_END")
    a.e("s_load_dwordx2 s[4:5], s[0:1], 0")
    a.e("s_load_dwordx4 s[24:27], s[0:1], 72")
    a.e("s_load_dwordx2 s[6:7], s[0:1], 96")
    a.e("s_lshl_b32 s3, s2, 8")
    a.e("v_add_u32 v1, s3, v0")
    a.e("v_lshlrev_b32 v2, 5, v1")
    a.e("v_lshlrev_b32 v3, 4, v1")
    a.e("s_mov_b32 s28, 0x%x" % ((1 << 32) // 72 + 1))
    a.e("v_mul_hi_u32 v4, v1, s28")
    a.e("v_mul_u32_u24 v4, 72, v4")
    a.e("v_sub_u32 v4, v1, v4")
    a.e("v_lshlrev_b32 v4, 4, v4")
    a.e("s_waitcnt lgkmcnt(0)")
    srd(a, 8, 4, 5, S * D * 2)
    srd(a, 12, 6, 7, 4 * P_BYTES, WS_P)
    srd(a, 16, 26, 27, S * D * 2)
    srd(a, 20, 24, 25, D * 2)
    for p in range(4):
        a.e("s_mov_b32 s29, 0x%x" % (p * P_BYTES))
        a.e("buffer_load_dwordx4 v[%d:%d], v2, s[12:15], s29 offen" % (16 + p * 8, 19 + p * 8))
        a.e("buffer_load_dwordx4 v[%d:%d], v2, s[12:15], s29 offen offset:16" % (20 + p * 8, 23 + p * 8))
    a.e("buffer_load_dwordx4 v[8:11], v3, s[8:11], 0 offen")
    a.e("buffer_load_dwordx4 v[12:15], v4, s[20:23], 0 offen")
    a.e("s_mov_b32 s30, 0xffff0000")
    a.e("s_mov_b32 s31, 0xbfb8aa3b")
    a.e("s_waitcnt vmcnt(0)")

    def rnd2(x, y, t):
        a.e("v_cvt_pk_bf16_f32 v%d, v%d, v%d" % (t, x, y))
        a.e("v_lshlrev_b32 v%d, 16, v%d" % (x, t))
        a.e("v_and_b32 v%d, s30, v%d" % (y, t))

    for j in range(4):
        e0, e1 = 2 * j, 2 * j + 1
        p0, p1, p2, p3 = 16, 24, 32, 40
        rnd2(p0 + e0, p0 + e1, 48)
        rnd2(p1 + e0, p1 + e1, 48)
        a.e("v_sub_f32 v%d, v%d, v%d" % (p0 + e0, p0 + e0, p1 + e0))
        a.e("v_sub_f32 v%d, v%d, v%d" % (p0 + e1, p0 + e1, p1 + e1))
        rnd2(p0 + e0, p0 + e1, 48)
        a.e("v_add_f32 v%d, v%d, v%d" % (p2 + e0, p2 + e0, p3 + e0))
        a.e("v_add_f32 v%d, v%d, v%d" % (p2 + e1, p2 + e1, p3 + e1))
        rnd2(p2 + e0, p2 + e1, 48)
        a.e("v_lshlrev_b32 v50, 16, v%d" % (12 + j))
        a.e("v_and_b32 v51, s30, v%d" % (12 + j))
        a.e("v_add_f32 v%d, v%d, v50" % (p2 + e0, p2 + e0))
        a.e("v_add_f32 v%d, v%d, v51" % (p2 + e1, p2 + e1))
        rnd2(p2 + e0, p2 + e1, 48)
        a.e("v_mul_f32 v50, s31, v%d" % (p2 + e0))
        a.e("v_mul_f32 v51, s31, v%d" % (p2 + e1))
        a.e("v_exp_f32 v50, v50")
        a.e("v_exp_f32 v51, v51")
        a.e("s_nop 0")
        a.e("v_add_f32 v50, 1.0, v50")
        a.e("v_add_f32 v51, 1.0, v51")
        a.e("v_rcp_f32 v50, v50")
        a.e("v_rcp_f32 v51, v51")
        a.e("s_nop 0")
        a.e("v_mul_f32 v%d, v%d, v50" % (p2 + e0, p2 + e0))
        a.e("v_mul_f32 v%d, v%d, v51" % (p2 + e1, p2 + e1))
        rnd2(p2 + e0, p2 + e1, 48)
        a.e("v_mul_f32 v%d, v%d, v%d" % (p0 + e0, p0 + e0, p2 + e0))
        a.e("v_mul_f32 v%d, v%d, v%d" % (p0 + e1, p0 + e1, p2 + e1))
        rnd2(p0 + e0, p0 + e1, 48)
        a.e("v_lshlrev_b32 v50, 16, v%d" % (8 + j))
        a.e("v_and_b32 v51, s30, v%d" % (8 + j))
        a.e("v_add_f32 v50, v50, v%d" % (p0 + e0))
        a.e("v_add_f32 v51, v51, v%d" % (p0 + e1))
        a.e("v_cvt_pk_bf16_f32 v%d, v50, v51" % (52 + j))
    a.e("buffer_store_dwordx4 v[52:55], v3, s[16:19], 0 offen")
    a.label("KC_END")
    a.e("s_endpgm")
    return a.text(), descriptor("kc_kernel", 64, 64, 40)


HEADER = """; Kernarg layout for this problem (104 bytes, ptrs only, base s[0:1]):
"""


def main():
    parts = [gen_ln(), gen_ka2(), gen_kb(), gen_kc()]
    out = HEADER
    out += "; @launch kernel=ln_kernel grid=(256,1,1) block=(256,1,1) lds=0\n"
    out += "; @launch kernel=ka_kernel grid=(256,1,1) block=(512,1,1) lds=%d\n" % (KA_STAGE * KA_NBUF)
    out += "; @launch kernel=kb_kernel grid=(256,1,1) block=(512,1,1) lds=%d\n" % (KB_STAGE * 4)
    out += "; @launch kernel=kc_kernel grid=(576,1,1) block=(256,1,1) lds=0\n"
    out += '.amdgcn_target "amdgcn-amd-amdhsa--gfx950"\n.text\n'
    for t, _ in parts:
        out += t
    out += '.section .rodata,"a"\n'
    for _, d in parts:
        out += ".p2align 6\n" + d
    path = sys.argv[1] if len(sys.argv) > 1 else "cdna_kernels/%s.s" % NAME
    open(path, "w").write(out)
    print("wrote", path, len(out), "bytes")


if __name__ == "__main__":
    for u in range(1152 + 64):
        assert (u * 3641) >> 16 == u // 18
    for u in range(1536 + 64):
        assert (u * 2731) >> 16 == u // 24
    main()
```
